```python
import torch

def _softmax(x, axis=-1):
    return torch.softmax(x, dim=axis)
def _gelu(x):
    return torch.nn.functional.gelu(x, approximate="tanh")
def _silu(x):
    return torch.nn.functional.silu(x)
def _sigmoid(x):
    return torch.sigmoid(x)
def _layernorm(x, axis=-1, eps=1e-5):
    m = x.mean(dim=axis, keepdim=True)
    v = x.var(dim=axis, keepdim=True, unbiased=False)
    return (x - m) / torch.sqrt(v + eps)
def _scatter_add(tgt, idx, src, axis=0):
    return tgt.clone().index_add_(axis, idx, src)
def _segment_sum(src, seg, n):
    out = torch.zeros((n,) + src.shape[1:], dtype=src.dtype)
    return out.index_add_(0, seg, src)
def _pad(x, pw):
    flat = tuple(v for pair in reversed(pw) for v in pair)
    return torch.nn.functional.pad(x, flat)

kernel_name = 'parallel_sum__softmax_full_mha__swiglu_ffn__prompt'

def setup_inputs():

    _w = (lambda a: (lambda t: t.to(torch.bfloat16) if t.is_floating_point() else t)(torch.as_tensor(a)))
    def _A_setup():
        B, S, D = 1, 2048, 576
        return {
            "x": _w((lambda *s: torch.randn(*s, dtype=torch.bfloat16) * 0.05)(B, S, D)),
            "wqkv": _w((lambda *s: torch.randn(*s, dtype=torch.bfloat16) * 0.2)(D, 3 * D)),
            "wo": _w((lambda *s: torch.randn(*s, dtype=torch.bfloat16) * 0.1)(D, D)),
        }
    _A_in = _A_setup()

    def _B_setup():
        B, S, D, F = 1, 2048, 576, 4608
        return {
            "x": _w((lambda *s: torch.randn(*s, dtype=torch.bfloat16) * 0.05)(B, S, D)),
            "w_gate": _w((lambda *s: torch.randn(*s, dtype=torch.bfloat16) * 0.1)(D, F)),
            "w_up": _w((lambda *s: torch.randn(*s, dtype=torch.bfloat16) * 0.1)(D, F)),
            "w_down": _w((lambda *s: torch.randn(*s, dtype=torch.bfloat16) * 0.1)(F, D)),
        }
    _B_in = _B_setup()

    return {
        "A_x": _A_in["x"],
        "A_wqkv": _A_in["wqkv"],
        "A_wo": _A_in["wo"],
        "B_x": _B_in["x"],
        "B_w_gate": _B_in["w_gate"],
        "B_w_up": _B_in["w_up"],
        "B_w_down": _B_in["w_down"],
    }

def reference(A_x, A_wqkv, A_wo, B_x, B_w_gate, B_w_up, B_w_down):
    def _A_ref(x, wqkv, wo):
        B, S, D = x.shape
        H = 32; Dh = D // H
        qkv = (lambda x, *d: x.permute(*d))((x @ wqkv).reshape(B, S, 3, H, Dh), 2, 0, 3, 1, 4)
        q, k, v = qkv[0], qkv[1], qkv[2]
        scale = Dh ** -0.5
        scores = torch.einsum("bhqd,bhkd->bhqk", q, k) * scale
        p = _softmax(scores, axis=-1)
        o = torch.einsum("bhqk,bhkd->bhqd", p, v)
        return (lambda x, *d: x.permute(*d))(o, 0, 2, 1, 3).reshape(B, S, D) @ wo

    def _B_ref(x, w_gate, w_up, w_down):
        g = _silu(x @ w_gate)
        u = x @ w_up
        return (g * u) @ w_down

    x = A_x
    xn = _layernorm(x, axis=-1)
    return x + _A_ref(xn, A_wqkv, A_wo) + _B_ref(xn, B_w_gate, B_w_up, B_w_down)
```

```python
S_TOK = 2048
D = 576
F = 4608
H = 32
DH = 18
WS_XF  = 0x0
WS_QKP = 0x240000
WS_VF  = 0x6C0000
WS_OF  = 0x900000
WS_OX  = 0xB00000
WS_HF  = 0xC00000
WS_P   = 0x1E00000
WS_END = 0x3000000
KA_X, KA_WQKV, KA_WO, KA_BX, KA_WG, KA_WU, KA_WD, KA_OUT, KA_DBG, KA_WS = [8*i for i in range(10)]

class Asm:
    def __init__(self):
        self.lines = []
    def __call__(self, s=""):
        for l in s.split("\n"):
            l = l.strip()
            if l: self.lines.append(l)
    def label(self, l): self.lines.append(l + ":")
    def extend(self, lst):
        for l in lst: self(l)
    def text(self):
        out = []
        for l in self.lines:
            out.append(l if l.endswith(":") or l.startswith(".") else "  " + l)
        return "\n".join(out) + "\n"

def vr(base, n=1):
    return f"v{base}" if n == 1 else f"v[{base}:{base+n-1}]"
def ar(base, n=1):
    return f"a{base}" if n == 1 else f"a[{base}:{base+n-1}]"
def sr(base, n=1):
    return f"s{base}" if n == 1 else f"s[{base}:{base+n-1}]"

def srd(a, sreg, ptr, size):
    a(f"s_mov_b32 s{sreg}, s{ptr}")
    a(f"s_and_b32 s{sreg+1}, s{ptr+1}, 0xffff")
    a(f"s_mov_b32 s{sreg+2}, {size}")
    a(f"s_mov_b32 s{sreg+3}, 0x20000")

def kernel_header(name):
    return f".globl {name}\n.p2align 8\n.type {name},@function\n{name}:\n"

def kernel_desc(name, vgpr, accum, sgpr=100):
    return f""".section .rodata,"a"
.p2align 6
.amdhsa_kernel {name}
  .amdhsa_next_free_vgpr {vgpr}
  .amdhsa_next_free_sgpr {sgpr}
  .amdhsa_accum_offset {accum}
  .amdhsa_group_segment_fixed_size 0
  .amdhsa_kernarg_size 80
  .amdhsa_user_sgpr_count 2
  .amdhsa_user_sgpr_kernarg_segment_ptr 1
  .amdhsa_system_sgpr_workgroup_id_x 1
  .amdhsa_float_denorm_mode_32 3
.end_amdhsa_kernel
.text
"""

def interleave(backbone, fillers, per=None, start=0):
    out = []
    nb = len(backbone) - start
    nf = len(fillers)
    k = 0
    for i, b in enumerate(backbone):
        out.append(b)
        if i >= start:
            tgt = (nf * (i - start + 1) + nb - 1) // nb if per is None else min(nf, per * (i - start + 1))
            while k < tgt:
                out.append(fillers[k]); k += 1
    out.extend(fillers[k:])
    return out
```

```python
from common import *
def gen_k0():
    a = Asm()
    name = "k0_ln_kernel"
    a.lines.append(kernel_header(name).rstrip("\n"))
    a("s_cmp_ge_u32 s2, 256")
    a("s_cbranch_scc1 k0_end")
    a(f"s_load_dwordx2 s[4:5], s[0:1], {KA_X}")
    a(f"s_load_dwordx2 s[6:7], s[0:1], {KA_WS}")
    a("v_lshrrev_b32 v1, 5, v0")
    a("v_and_b32 v2, 31, v0")
    a("s_lshl_b32 s3, s2, 3")
    a("v_add_u32 v3, s3, v1")
    a("v_mul_u32_u24 v4, 1152, v3")
    a("v_lshl_add_u32 v4, v2, 4, v4")
    a("v_add_u32 v5, 1024, v4")
    a("v_mov_b32 v6, 0x7ffffff0")
    a("v_cmp_gt_u32 vcc, 8, v2")
    a("s_nop 1")
    a("v_cndmask_b32 v5, v6, v5, vcc")
    a("s_waitcnt lgkmcnt(0)")
    srd(a, 8, 4, S_TOK*D*2)
    srd(a, 12, 6, WS_END)
    a("buffer_load_dwordx4 v[8:11], v4, s[8:11], 0 offen")
    a("buffer_load_dwordx4 v[12:15], v4, s[8:11], 0 offen offset:512")
    a("buffer_load_dwordx4 v[16:19], v5, s[8:11], 0 offen")
    a("v_lshrrev_b32 v44, 5, v3")
    a("v_mul_u32_u24 v44, 36, v44")
    a("v_lshrrev_b32 v45, 1, v2")
    a("v_add_u32 v44, v44, v45")
    a("v_lshlrev_b32 v44, 6, v44")
    a("v_and_b32 v45, 1, v2")
    a("v_lshlrev_b32 v45, 5, v45")
    a("v_and_b32 v46, 31, v3")
    a("v_add3_u32 v44, v44, v45, v46")
    a("v_lshlrev_b32 v44, 4, v44")
    a("v_add_u32 v45, 16384, v44")
    a("v_add_u32 v46, 32768, v44")
    a("v_cndmask_b32 v46, v6, v46, vcc")
    a("s_waitcnt vmcnt(0)")
    for q in range(12):
        a(f"v_lshlrev_b32 v{20+2*q}, 16, v{8+q}")
        a(f"v_and_b32 v{21+2*q}, 0xffff0000, v{8+q}")
    a("v_add_f32 v47, v20, v21")
    for q in range(2, 24):
        a(f"v_add_f32 v47, v47, v{20+q}")
    def reduce32(reg):
        for x in (16, 8, 4, 2, 1):
            a(f"ds_swizzle_b32 v48, v{reg} offset:{(x<<10)|0x1f}")
            a("s_waitcnt lgkmcnt(0)")
            a(f"v_add_f32 v{reg}, v{reg}, v48")
    reduce32(47)
    a(f"v_mul_f32 v47, {float_hex(1.0/576)}, v47")
    for q in range(24):
        a(f"v_sub_f32 v{20+q}, v{20+q}, v47")
    for q in range(16, 24):
        a(f"v_cndmask_b32 v{20+q}, 0, v{20+q}, vcc")
    a("v_mul_f32 v49, v20, v20")
    for q in range(1, 24):
        a(f"v_fmac_f32 v49, v{20+q}, v{20+q}")
    reduce32(49)
    a(f"v_mov_b32 v50, {float_hex(1e-5)}")
    a(f"v_fmac_f32 v50, {float_hex(1.0/576)}, v49")
    a("v_rsq_f32 v50, v50")
    a("s_nop 0")
    for q in range(24):
        a(f"v_mul_f32 v{20+q}, v{20+q}, v50")
    for q in range(12):
        a(f"v_cvt_pk_bf16_f32 v{8+q}, v{20+2*q}, v{21+2*q}")
    a("buffer_store_dwordx4 v[8:11], v44, s[12:15], 0 offen")
    a("buffer_store_dwordx4 v[12:15], v45, s[12:15], 0 offen")
    a("buffer_store_dwordx4 v[16:19], v46, s[12:15], 0 offen")
    a("s_waitcnt vmcnt(0)")
    a.label("k0_end")
    a("s_endpgm")
    return a.text() + kernel_desc(name, 56, 56, 24), name

import struct
def float_hex(x):
    return "0x%08x" % struct.unpack("<I", struct.pack("<f", x))[0]
```

```python
from common import *
from k0 import float_hex
import math

SLOT = [0, 36864+32, 73984, 73984+36864+32]
K1_LDS = 147968
QSCALE = (18 ** -0.5) * 1.4426950408889634
NLOG2E = -1.4426950408889634

V_LANE, V_DMAQ, V_DMAF, V_TRD, V_TRM, V_CUR, V_NXT, V_L16, V_QK, V_VOFF = 1, 2, 3, 4, 5, 6, 7, 8, 9, 10
ACC = [64, 96]
RING = 128
TMP = 144
XV = 224
S_WQ, S_WG, S_WU, S_WS = 8, 12, 16, 20
S_W, S_G, S_MT, S_T0, S_T1 = 24, 25, 26, 27, 28
S_CURB, S_NXTB = 29, 30
S_SOFF, S_TMP, S_TMP2 = 31, 32, 33
S_HOFF = 34
S_COL = 35
S_LOOP = 36
S_SCALE = 37
S_QKOFF = 38
S_DROW = 39
S_GROWF = 40
S_GROWQ = 41
S_TB = 42
S_HOFF2 = 43

def xfrag(b, s):
    if b == 0: return ar(4*s, 4)
    if s < 28: return ar(144 + 4*s, 4)
    return vr(XV + 4*(s-28), 4)

def tr_reads(step, base_reg):
    r = RING + 4*(step % 4)
    return [f"ds_read_b64_tr_b16 {vr(r,2)}, v{base_reg} offset:{(step%36)*1024}",
            f"ds_read_b64_tr_b16 {vr(r+2,2)}, v{base_reg} offset:{(step%36)*1024+256}"]

FAKE16 = False
def mfma(kind, acc, b, s):
    if FAKE16:
        w = vr(RING + 4*(s % 4), 4)
        x = xfrag(b, s)
        out = []
        for q in range(2):
            d = vr(acc + 16*b + 4*(2*(s%2)+q), 4)
            c = "0" if s < 2 else d
            out.append(f"v_mfma_f32_16x16x32_bf16 {d}, {w}, {x}, {c}")
        return "\n".join(out)
    w = vr(RING + 4*(s % 4), 4)
    x = xfrag(b, s)
    d = vr(acc + 16*b, 16)
    c = "0" if s == 0 else d
    if kind == "v":
        return f"v_mfma_f32_32x32x16_bf16 {d}, {x}, {w}, {c}"
    return f"v_mfma_f32_32x32x16_bf16 {d}, {w}, {x}, {c}"

def dma_slot(srd_, vpat, col_sreg, rowoff_sreg, stride, lds_base_sreg, lds_add):
    out = []
    for i in range(9):
        g = []
        g.append(f"s_add_u32 m0, s{lds_base_sreg}, {lds_add + i*1024}")
        g.append(f"s_add_u32 s{S_SOFF}, s{col_sreg}, s{rowoff_sreg}" if i == 0 else f"s_add_u32 s{S_SOFF}, s{S_SOFF}, {16*stride}")
        g.append(f"buffer_load_dwordx4 v{vpat}, s[{srd_}:{srd_+3}], s{S_SOFF} offen lds")
        out.append(g)
    return out

def epi_ffn(acc, hoff_sreg):
    out = []
    for b in range(2):
        R = acc + 16*b
        T = TMP + 8*b
        for k in range(8):
            out.append(f"v_mul_f32 v{T+k}, {float_hex(NLOG2E)}, v{R+k}")
        for k in range(8):
            out.append(f"v_exp_f32 v{T+k}, v{T+k}")
        for k in range(8):
            out.append(f"v_mul_f32 v{R+k}, v{R+k}, v{R+8+k}")
        for k in range(8):
            out.append(f"v_add_f32 v{T+k}, 1.0, v{T+k}")
        for k in range(8):
            out.append(f"v_rcp_f32 v{T+k}, v{T+k}")
        for k in range(8):
            out.append(f"v_mul_f32 v{R+k}, v{R+k}, v{T+k}")
        for k in range(4):
            out.append(f"v_cvt_pk_bf16_f32 v{TMP+16+4*b+k}, v{R+2*k}, v{R+2*k+1}")
        if b == 0:
            out.append(f"buffer_store_dwordx4 {vr(TMP+16,4)}, v{V_L16}, s[{S_WS}:{S_WS+3}], s{hoff_sreg} offen")
        else:
            out.append(f"s_add_u32 s{S_HOFF2}, s{hoff_sreg}, {288*1024}")
            out.append(f"buffer_store_dwordx4 {vr(TMP+20,4)}, v{V_L16}, s[{S_WS}:{S_WS+3}], s{S_HOFF2} offen")
    out.append(f"s_add_u32 s{hoff_sreg}, s{hoff_sreg}, 1024")
    return out

def epi_qk(acc):
    out = []
    for b in range(2):
        R = acc + 16*b
        for k in range(16):
            out.append(f"v_mul_f32 v{R+k}, s{S_SCALE}, v{R+k}")
        for k in range(8):
            out.append(f"v_cvt_pk_bf16_f32 v{TMP+8*b+k}, v{R+2*k}, v{R+2*k+1}")
        for k in range(8):
            j, p = k // 2, k % 2
            out.append(f"s_add_u32 s{S_TMP2}, s{S_QKOFF}, {(4*j+p)*8192 + b*128}")
            out.append(f"buffer_store_dword v{TMP+8*b+k}, v{V_QK}, s[{S_WS}:{S_WS+3}], s{S_TMP2} offen")
    out.append(f"s_add_u32 s{S_QKOFF}, s{S_QKOFF}, s{S_LOOP}")
    return out

def epi_v(acc, voff_reg):
    out = []
    for b in range(2):
        R = acc + 16*b
        for k in range(8):
            out.append(f"v_cvt_pk_bf16_f32 v{TMP+8*b+k}, v{R+2*k}, v{R+2*k+1}")
        for q in range(2):
            out.append(f"buffer_store_dwordx4 {vr(TMP+8*b+4*q,4)}, v{voff_reg}, s[{S_WS}:{S_WS+3}], s{S_QKOFF} offen offset:{(2*b+q)*576}")
    return out

def unit_stream(kind, acc, fillers, nxt=True, barrier=None, first_fill=4, dma=None, dma_lo=0, dma_hi=72):
    bb = []
    out = []
    fl = list(fillers)
    nf = len(fl)
    lo, hi = first_fill, 64
    k = 0
    dma = dma or []
    nd = len(dma); kd = 0
    for s in range(36):
        pre = []
        if s == 33 and nxt and barrier is not None:
            pre += barrier
        rd = []
        if s + 3 < 36: rd = tr_reads(s + 3, V_CUR)
        elif nxt: rd = tr_reads(s + 3, V_NXT)
        for b in range(2):
            if b == 0:
                out += pre
                if not (s >= 33 and not nxt):
                    if s == 33 and nxt and barrier is not None:
                        pass
                    else:
                        out.append("s_waitcnt lgkmcnt(4)")
                else:
                    out.append(f"s_waitcnt lgkmcnt({2*(35-s)})")
            out.append(mfma(kind, acc, b, s))
            if rd: out.append(rd[b])
            slot = 2*s + b
            if nd and slot >= dma_lo:
                tgt = min(nd, (nd * (slot - dma_lo + 1) + (dma_hi - dma_lo) - 1) // (dma_hi - dma_lo))
                while kd < tgt:
                    out.extend(dma[kd]); kd += 1
            if slot >= lo:
                tgt = min(nf, (nf * (slot - lo + 1) + (hi - lo) - 1) // (hi - lo))
                while k < tgt:
                    out.append(fl[k]); k += 1
    assert k == nf and kd == nd
    return out

STAMP = False
DSPLIT = 13
DHI = 26
NV = 1
NST = [0]
def stamp(a):
    if not STAMP: return
    i = NST[0]; NST[0] = max(NST[0], i+1)
    a(f"s_memtime s[{64+2*i}:{65+2*i}]")
def stamp_at(a, i):
    if not STAMP: return
    a(f"s_memtime s[{64+2*i}:{65+2*i}]")
def stamp_out(a, n):
    if not STAMP: return
    a("s_waitcnt lgkmcnt(0)")
    a("s_lshl_b32 s4, s2, 2")
    a(f"s_add_u32 s4, s4, s{S_W}")
    a("s_lshl_b32 s4, s4, 6")
    a(f"s_add_u32 s4, s4, {WS_END}")
    a("v_mov_b32 v12, s4")
    for i in range(n):
        a(f"v_mov_b32 v13, s{64+2*i}")
        a(f"global_store_dword v12, v13, s[46:47] offset:{4*i}")
def gen_k1(stampit=False, fake16=False):
    global STAMP, FAKE16
    FAKE16 = fake16
    STAMP = stampit
    a = Asm()
    name = "k1_gemm1_kernel"
    a.lines.append(kernel_header(name).rstrip("\n"))
    a("s_cmp_ge_u32 s2, 256")
    a("s_cbranch_scc1 k1_end")
    stamp_at(a, 0)
    if STAMP: a("s_memrealtime s[84:85]")
    a(f"s_load_dwordx2 s[4:5], s[0:1], {KA_WQKV}")
    a(f"s_load_dwordx2 s[6:7], s[0:1], {KA_WG}")
    a(f"s_load_dwordx2 s[44:45], s[0:1], {KA_WU}")
    a(f"s_load_dwordx2 s[46:47], s[0:1], {KA_WS}")
    a(f"v_and_b32 v{V_LANE}, 63, v0")
    a("v_lshrrev_b32 v11, 6, v0")
    a("s_nop 0")
    a(f"v_readfirstlane_b32 s{S_W}, v11")
    a(f"s_and_b32 s{S_TMP}, s2, 7")
    a(f"s_lshr_b32 s{S_TMP2}, s2, 3")
    a(f"s_and_b32 s{S_G}, s{S_TMP2}, 3")
    a(f"s_lshl_b32 s{S_TMP}, s{S_TMP}, 2")
    a(f"s_add_u32 s{S_G}, s{S_G}, s{S_TMP}")
    a(f"s_lshr_b32 s{S_MT}, s{S_TMP2}, 2")
    a(f"s_lshl_b32 s{S_T0}, s{S_G}, 1")
    a(f"s_add_u32 s{S_T1}, s{S_T0}, 1")
    a(f"s_add_u32 s{S_TMP}, s{S_G}, 22")
    a(f"s_cmp_lt_u32 s{S_G}, 22")
    a(f"s_cselect_b32 s{S_T0}, s{S_T0}, s{S_TMP}")
    a(f"s_cselect_b32 s{S_T1}, s{S_T1}, s{S_TMP}")
    a(f"v_lshrrev_b32 v11, 2, v{V_LANE}")
    a(f"v_and_b32 v12, 3, v{V_LANE}")
    a("v_lshlrev_b32 v12, 4, v12")
    a(f"v_mul_u32_u24 v{V_DMAQ}, 3456, v11")
    a(f"v_add_u32 v{V_DMAQ}, v{V_DMAQ}, v12")
    a(f"v_mul_u32_u24 v{V_DMAF}, 9216, v11")
    a(f"v_add_u32 v{V_DMAF}, v{V_DMAF}, v12")
    a(f"v_lshlrev_b32 v{V_L16}, 4, v{V_LANE}")
    a(f"v_and_b32 v11, 15, v{V_LANE}")
    a("v_lshrrev_b32 v12, 2, v11")
    a("v_and_b32 v11, 3, v11")
    a("v_lshlrev_b32 v11, 3, v11")
    a(f"v_lshrrev_b32 v13, 5, v{V_LANE}")
    a("v_lshl_add_u32 v12, v13, 3, v12")
    a("v_lshl_add_u32 v11, v12, 6, v11")
    a(f"v_bfe_u32 v12, v{V_LANE}, 4, 1")
    a(f"v_lshl_add_u32 v{V_TRD}, v12, 5, v11")
    a(f"v_mul_u32_u24 v12, {36864+32}, v12")
    a(f"v_add_u32 v{V_TRM}, v12, v11")
    a(f"v_and_b32 v11, 31, v{V_LANE}")
    a("v_lshlrev_b32 v11, 2, v11")
    a(f"v_lshl_add_u32 v{V_QK}, v13, 14, v11")
    a("s_waitcnt lgkmcnt(0)")
    srd(a, S_WQ, 4, 576*1728*2)
    srd(a, S_WG, 6, 576*4608*2)
    srd(a, S_WU, 44, 576*4608*2)
    srd(a, S_WS, 46, WS_END)
    a(f"s_mul_i32 s{S_DROW}, s{S_W}, {144*64}")
    a(f"s_mul_i32 s{S_GROWF}, s{S_W}, {144*9216}")
    a(f"s_mul_i32 s{S_GROWQ}, s{S_W}, {144*3456}")
    a(f"s_lshl_b32 s{S_TB}, s{S_MT}, 3")
    a(f"s_lshl_b32 s{S_TMP}, s{S_W}, 1")
    a(f"s_add_u32 s{S_TB}, s{S_TB}, s{S_TMP}")
    a(f"s_add_u32 s{S_CURB}, s{S_DROW}, {SLOT[0]}")
    a(f"s_lshl_b32 s{S_TMP}, s{S_T0}, 6")
    for g in dma_slot(S_WQ, V_DMAQ, S_TMP, S_GROWQ, 3456, S_CURB, 0): a.extend(g)
    a(f"s_lshl_b32 s{S_TMP}, s{S_T1}, 6")
    for g in dma_slot(S_WQ, V_DMAQ, S_TMP, S_GROWQ, 3456, S_CURB, SLOT[1]): a.extend(g)
    a(f"s_mul_i32 s{S_TMP}, s{S_TB}, {36*1024}")
    for b in range(2):
        for s in range(36):
            if s % 4 == 0:
                a(f"s_add_u32 s{S_TMP2}, s{S_TMP}, {WS_XF + (b*36 + s)*1024}")
            a(f"buffer_load_dwordx4 {xfrag(b,s)}, v{V_L16}, s[{S_WS}:{S_WS+3}], s{S_TMP2} offen offset:{(s%4)*1024}")
    a(f"s_mul_i32 s{S_COL}, s{S_G}, 288")
    a(f"s_add_u32 s{S_NXTB}, s{S_DROW}, {SLOT[2]}")
    for g in dma_slot(S_WG, V_DMAF, S_COL, S_GROWF, 9216, S_NXTB, 0): a.extend(g)
    for g in dma_slot(S_WU, V_DMAF, S_COL, S_GROWF, 9216, S_NXTB, SLOT[1]): a.extend(g)
    a(f"s_add_u32 s{S_COL}, s{S_COL}, 64")
    a(f"s_mul_i32 s{S_HOFF}, s{S_TB}, 288")
    a(f"s_mul_i32 s{S_TMP}, s{S_G}, 9")
    a(f"s_add_u32 s{S_HOFF}, s{S_HOFF}, s{S_TMP}")
    a(f"s_lshl_b32 s{S_HOFF}, s{S_HOFF}, 10")
    a(f"s_add_u32 s{S_HOFF}, s{S_HOFF}, {WS_HF}")
    stamp_at(a, 1)
    a("s_waitcnt vmcnt(18)")
    a("s_barrier")
    stamp_at(a, 2)
    a(f"v_mov_b32 v{V_CUR}, v{V_TRD}")
    a(f"v_add_u32 v{V_NXT}, {SLOT[1]}, v{V_TRD}")
    for s in range(3):
        a.extend(tr_reads(s, V_CUR))
    barrier1 = ["s_waitcnt vmcnt(@N@) lgkmcnt(0)", "s_barrier"]
    a(f"s_cmp_ge_u32 s{S_T0}, 36")
    a("s_cbranch_scc1 k1_vpath")
    a(f"s_mov_b32 s{S_SCALE}, {float_hex(QSCALE)}")
    a(f"s_cmp_lt_u32 s{S_T0}, 18")
    a(f"s_cselect_b32 s{S_SCALE}, s{S_SCALE}, 1.0")
    a(f"s_lshl_b32 s{S_QKOFF}, s{S_T0}, 17")
    a(f"s_lshl_b32 s{S_TMP}, s{S_TB}, 7")
    a(f"s_add_u32 s{S_QKOFF}, s{S_QKOFF}, s{S_TMP}")
    a(f"s_add_u32 s{S_QKOFF}, s{S_QKOFF}, {WS_QKP}")
    a(f"s_mov_b32 s{S_LOOP}, {16*8192}")
    def after_q(kind, epi0, epi1, tag):
        a.extend(unit_stream(kind, ACC[0], [], nxt=True, barrier=None))
        stamp_at(a, 3)
        a(f"v_mov_b32 v{V_CUR}, v{V_NXT}")
        a(f"v_add_u32 v{V_NXT}, {SLOT[2]}, v{V_TRM}")
        st = unit_stream(kind, ACC[1], epi0, nxt=True, barrier=["s_waitcnt vmcnt(0) lgkmcnt(0)", "s_barrier"])
        a.extend(st)
        stamp_at(a, 4)
        a(f"v_mov_b32 v{V_CUR}, v{V_NXT}")
        a(f"v_add_u32 v{V_NXT}, 32, v{V_CUR}")
        a(f"s_add_u32 s{S_NXTB}, s{S_DROW}, {SLOT[0]}")
        dm = dma_slot(S_WG, V_DMAF, S_COL, S_GROWF, 9216, S_NXTB, 0) + dma_slot(S_WU, V_DMAF, S_COL, S_GROWF, 9216, S_NXTB, SLOT[1])[:DSPLIT-9]
        a.extend(unit_stream("n", ACC[0], epi1, nxt=True, barrier=None, dma=dm, dma_lo=0, dma_hi=72))
        a("s_branch k1_ffn")
    e0 = epi_qk(ACC[0]); e1 = epi_qk(ACC[1])
    after_q("n", e0, e1, "qk")
    a.label("k1_vpath")
    for (tile, reg) in ((S_T0, V_VOFF), (S_T1, V_VOFF+1)):
        a(f"s_sub_u32 s{S_TMP}, s{tile}, 36")
        a(f"s_lshl_b32 s{S_TMP}, s{S_TMP}, 5")
        a(f"v_and_b32 v12, 31, v{V_LANE}")
        a(f"v_add_u32 v12, s{S_TMP}, v12")
        a("v_mul_u32_u24 v13, 3641, v12")
        a("v_lshrrev_b32 v13, 16, v13")
        a("v_mul_u32_u24 v14, 18, v13")
        a("v_sub_u32 v12, v12, v14")
        a(f"v_mul_u32_u24 v13, {128*576}, v13")
        a("v_lshl_add_u32 v13, v12, 4, v13")
        a(f"v_lshrrev_b32 v12, 5, v{V_LANE}")
        a("v_mul_u32_u24 v12, 288, v12")
        a(f"v_add_u32 v{reg}, v13, v12")
    a(f"s_mul_i32 s{S_QKOFF}, s{S_TB}, {2*576}")
    a(f"s_add_u32 s{S_QKOFF}, s{S_QKOFF}, {WS_VF}")
    after_q("v", epi_v(ACC[0], V_VOFF), epi_v(ACC[1], V_VOFF+1), "v")
    a.label("k1_ffn")
    stamp_at(a, 5)
    a(f"s_mov_b32 s{S_CURB}, {SLOT[2]}")
    a(f"s_mov_b32 s{S_LOOP}, 3")
    def body(with_dma, last, prev_dma=True):
        a(f"v_mov_b32 v{V_CUR}, v{V_NXT}")
        a(f"s_sub_u32 s{S_CURB}, {SLOT[2]}, s{S_CURB}")
        a(f"v_add_u32 v{V_NXT}, s{S_CURB}, v{V_TRM}")
        dm = dma_slot(S_WU, V_DMAF, S_COL, S_GROWF, 9216, S_NXTB, SLOT[1])[DSPLIT-9:]
        if dm: dm[-1] = dm[-1] + [f"s_add_u32 s{S_COL}, s{S_COL}, 64"]
        a.extend(unit_stream("n", ACC[1], epi_ffn(ACC[0], S_HOFF), nxt=True, barrier=["s_waitcnt vmcnt(@) lgkmcnt(0)".replace("@", str(NV)), "s_barrier"], dma=dm, dma_lo=0, dma_hi=DHI))
        a(f"v_mov_b32 v{V_CUR}, v{V_NXT}")
        a(f"v_add_u32 v{V_NXT}, 32, v{V_CUR}")
        fl = []
        if with_dma:
            a(f"s_sub_u32 s{S_NXTB}, {SLOT[2]}, s{S_CURB}")
            a(f"s_add_u32 s{S_NXTB}, s{S_NXTB}, s{S_DROW}")
            dm = dma_slot(S_WG, V_DMAF, S_COL, S_GROWF, 9216, S_NXTB, 0) + dma_slot(S_WU, V_DMAF, S_COL, S_GROWF, 9216, S_NXTB, SLOT[1])[:DSPLIT-9]
        else:
            dm = []
        fl = fl + epi_ffn(ACC[1], S_HOFF)
        a.extend(unit_stream("n", ACC[0], fl, nxt=not last, barrier=None, dma=dm, dma_lo=0, dma_hi=72))
    a.label("k1_loop")
    body(True, False)
    a(f"s_sub_u32 s{S_LOOP}, s{S_LOOP}, 1")
    a(f"s_cmp_lg_u32 s{S_LOOP}, 0")
    a("s_cbranch_scc1 k1_loop")
    stamp_at(a, 6)
    body(False, True)
    stamp_at(a, 7)
    a("s_nop 15")
    a.extend(epi_ffn(ACC[0], S_HOFF))
    a("s_waitcnt vmcnt(0)")
    stamp_at(a, 8)
    if STAMP:
        a("s_memrealtime s[86:87]")
        a("s_waitcnt lgkmcnt(0)")
        a("s_mov_b32 s82, s84")
        a("s_mov_b32 s84, s86")
    stamp_out(a, 11)
    a("s_waitcnt vmcnt(0)")
    a.label("k1_end")
    a("s_endpgm")
    return a.text() + kernel_desc(name, 512, 256, 96), name
```

```python
from common import *
from k0 import float_hex

WST = 36864
NWST = 3
KV0 = WST * NWST
KVST = 12800
KV_K, KV_X, KV_V = 0, 4096, 4608
K2_LDS = KV0 + 3 * KVST
CMARGIN = 90.0
STAMP = False

S_WS, S_WD = 8, 12
S_W, S_XCD, S_SLOT = 16, 17, 18
S_T, S_T2, S_T3 = 19, 20, 21

def stamp_at(a, i):
    if STAMP: a(f"s_memtime s[{64+2*i}:{65+2*i}]")
def stamp_out(a, n, wsptr):
    if not STAMP: return
    a("s_waitcnt lgkmcnt(0)")
    a("s_lshl_b32 s4, s2, 3")
    a(f"s_add_u32 s4, s4, s22")
    a("s_lshl_b32 s4, s4, 6")
    a(f"s_add_u32 s4, s4, {WS_END + 0x20000}")
    a("v_mov_b32 v12, s4")
    for i in range(n):
        a(f"v_mov_b32 v13, s{64+2*i}")
        a(f"global_store_dword v12, v13, s[{wsptr}:{wsptr+1}] offset:{4*i}")
    a("s_waitcnt vmcnt(0)")

A_Q1 = [16, 20]
A_Q2 = [24, 26]
A_K1 = [28, 32]
A_K2 = [36, 38]
A_V = [40, 48]
A_S = [64, 80]
A_P = [96, 104]
A_O = [112, 128]
A_RK, A_RX, A_RV = 4, 5, 6
A_NK, A_NX = 7, 8
A_L16, A_L4 = 9, 10
A_TMP = 144
SA_H, SA_TBQ, SA_SL, SA_CNT = 24, 25, 26, 27

def qk_mfmas(sbuf, kbuf, b):
    S = vr(A_S[sbuf], 16)
    return [f"v_mfma_f32_32x32x8_bf16 {S}, {vr(A_K2[kbuf],2)}, {vr(A_Q2[b],2)}, 0",
            f"v_mfma_f32_32x32x16_bf16 {S}, {vr(A_K1[kbuf],4)}, {vr(A_Q1[b],4)}, {S}"]
def pv_mfmas(pbuf, vbuf, b):
    O = vr(A_O[b], 16)
    return [f"v_mfma_f32_32x32x16_bf16 {O}, {vr(A_V[vbuf],4)}, {vr(A_P[pbuf],4)}, {O}",
            f"v_mfma_f32_32x32x16_bf16 {O}, {vr(A_V[vbuf]+4,4)}, {vr(A_P[pbuf]+4,4)}, {O}"]
def k_reads(kbuf, kt, rk, rx):
    return [f"ds_read_b128 {vr(A_K1[kbuf],4)}, v{rk} offset:{kt*1024}",
            f"ds_read_b32 v{A_K2[kbuf]}, v{rx} offset:{kt*128}"]
def v_reads(vbuf, kt):
    return [f"ds_read_b128 {vr(A_V[vbuf],4)}, v{A_RV} offset:{2*kt*1024}",
            f"ds_read_b128 {vr(A_V[vbuf]+4,4)}, v{A_RV} offset:{(2*kt+1)*1024}"]

def attn_step(j, kt, b, do_qk_next, do_pv_prev, pre=None, mid=None):
    sb, nb = j % 2, (j + 1) % 2
    S, P = A_S[sb], A_P[sb]
    mf = []
    nkt = kt if b == 0 else kt + 1
    nbq = 1 - b
    qk = qk_mfmas(nb, nkt % 2, nbq) if do_qk_next else []
    pkt = kt if b == 1 else kt - 1
    pv = pv_mfmas(nb, pkt % 2, nbq) if do_pv_prev else []
    order = []
    if qk: order.append(qk[0])
    if pv: order.append(pv[0])
    if qk: order.append(qk[1])
    if pv: order.append(pv[1])
    ex = [f"v_exp_f32 v{S+k}, v{S+k}" for k in range(16)]
    cv = [f"v_cvt_pk_bf16_f32 v{P+k}, v{S+2*k}, v{S+2*k+1}" for k in range(8)]
    out = list(pre or [])
    for g in range(4):
        if g < len(order): out.append(order[g])
        out += ex[4*g:4*g+4]
        if g >= 1: out += cv[2*(g-1):2*(g-1)+2]
        if g == 1 and mid: out += mid
    out += cv[6:8]
    return out

def gen_attn(a):
    a(f"s_lshl_b32 s{SA_H}, s{S_XCD}, 2")
    a(f"s_and_b32 s{S_T}, s{S_SLOT}, 3")
    a(f"s_add_u32 s{SA_H}, s{SA_H}, s{S_T}")
    a(f"s_lshr_b32 s{S_T}, s{S_SLOT}, 2")
    a(f"s_lshl_b32 s{SA_TBQ}, s{S_T}, 3")
    a(f"s_lshl_b32 s{S_T}, s{S_W}, 1")
    a(f"s_add_u32 s{SA_TBQ}, s{SA_TBQ}, s{S_T}")
    a("s_setprio 2")
    a(f"v_lshlrev_b32 v{A_L16}, 4, v1")
    a("v_and_b32 v2, 31, v1")
    a(f"v_lshlrev_b32 v{A_L4}, 2, v2")
    a("v_lshrrev_b32 v3, 5, v1")
    a(f"v_lshl_add_u32 v11, v3, 15, v{A_L4}")
    a(f"s_mul_i32 s{S_T}, s{SA_H}, {9*8192}")
    a(f"s_lshl_b32 s{S_T2}, s{SA_TBQ}, 7")
    a(f"s_add_u32 s{S_T}, s{S_T}, s{S_T2}")
    a(f"s_add_u32 s{S_T}, s{S_T}, {WS_QKP}")
    for b in range(2):
        for j in range(4):
            a(f"s_add_u32 s{S_T2}, s{S_T}, {j*8192 + b*128}")
            a(f"buffer_load_dword v{A_Q1[b]+j}, v11, s[{S_WS}:{S_WS+3}], s{S_T2} offen")
        a(f"s_add_u32 s{S_T2}, s{S_T}, {8*8192 + b*128}")
        a(f"buffer_load_dword v{A_Q2[b]}, v{A_L4}, s[{S_WS}:{S_WS+3}], s{S_T2} offen")
    for kb in range(2):
        a(f"v_mov_b32 v{A_K2[kb]+1}, 0x3f80")
    X = A_TMP
    a(f"v_and_b32 v{X}, 31, v1")
    a(f"v_mov_b32 v{X+1}, 0x3f803f80")
    a(f"v_cmp_eq_u32 vcc, 18, v{X}")
    a("s_nop 1")
    a(f"v_cndmask_b32 v{X+4}, 0, v{X+1}, vcc")
    a(f"v_mov_b32 v{X+5}, v{X+4}")
    a(f"v_mov_b32 v{X+6}, v{X+4}")
    a(f"v_mov_b32 v{X+7}, v{X+4}")
    a(f"v_cmp_le_u32 vcc, 18, v{X}")
    a("s_and_saveexec_b64 s[28:29], vcc")
    a(f"s_mul_i32 s{S_T}, s{S_W}, 6")
    for i in range(6):
        a(f"s_add_u32 s{S_T2}, s{S_T}, {i}")
        a(f"s_lshr_b32 s{S_T3}, s{S_T2}, 3")
        a(f"s_mul_i32 s{S_T3}, s{S_T3}, {KVST}")
        a(f"s_and_b32 s{S_T2}, s{S_T2}, 7")
        a(f"s_lshl_b32 s{S_T2}, s{S_T2}, 10")
        a(f"s_add_u32 s{S_T2}, s{S_T2}, s{S_T3}")
        a(f"s_add_u32 s{S_T2}, s{S_T2}, {KV0 + KV_V}")
        a(f"v_add_u32 v{X+2}, s{S_T2}, v{A_L16}")
        a(f"ds_write_b128 v{X+2}, {vr(X+4,4)}")
    a("s_mov_b64 exec, s[28:29]")
    for b in range(2):
        for k in range(16): a(f"v_mov_b32 v{A_O[b]+k}, 0")
    a(f"v_add_u32 v{A_RK}, {KV0 + KV_K}, v{A_L16}")
    a(f"v_add_u32 v{A_RX}, {KV0 + KV_X}, v{A_L4}")
    a(f"v_add_u32 v{A_RV}, {KV0 + KV_V}, v{A_L16}")
    a("s_waitcnt vmcnt(0) lgkmcnt(0)")
    a("v_cmp_gt_u32 vcc, 32, v1")
    a("s_nop 1")
    for b in range(2):
        a(f"v_cndmask_b32 v{A_Q2[b]}, 0, v{A_Q2[b]}, vcc")
        a(f"v_mov_b32 v{A_Q2[b]+1}, 0")
    stamp_at(a, 1)
    a("s_barrier")
    stamp_at(a, 2)
    M = [A_TMP, A_TMP + 1]
    a(f"v_mov_b32 v{M[0]}, 0xff800000")
    a(f"v_mov_b32 v{M[1]}, 0xff800000")
    for kt in range(4):
        a.extend(k_reads(kt % 2, kt, A_RK, A_RX))
        a("s_waitcnt lgkmcnt(0)")
        for b in range(2):
            a.extend(qk_mfmas(b, kt % 2, b))
        a("s_nop 15")
        for b in range(2):
            S = A_S[b]
            for k in range(8):
                a(f"v_max3_f32 v{M[b]}, v{S+2*k}, v{S+2*k+1}, v{M[b]}")
    for b in range(2):
        a(f"v_mov_b32 v{A_TMP+2}, v{M[b]}")
        a("s_nop 1")
        a(f"v_permlane32_swap_b32 v{A_TMP+2}, v{M[b]}")
        a("s_nop 1")
        a(f"v_max_f32 v{M[b]}, v{M[b]}, v{A_TMP+2}")
        a(f"v_add_f32 v{M[b]}, {float_hex(CMARGIN)}, v{M[b]}")
        a(f"v_sub_f32 v{M[b]}, 0, v{M[b]}")
        a(f"v_cvt_pk_bf16_f32 v{M[b]}, v{M[b]}, 0")
        a(f"v_cndmask_b32 v{A_Q2[b]+1}, 0, v{M[b]}, vcc")
    a("s_barrier")
    stamp_at(a, 3)
    a.extend(k_reads(0, 0, A_RK, A_RX))
    a("s_waitcnt lgkmcnt(0)")
    a.extend(qk_mfmas(0, 0, 0))
    a(f"s_mov_b32 s{SA_SL}, 0")
    a(f"s_mov_b32 s{SA_CNT}, 0")
    def chunk(first, last):
        if not last:
            a(f"s_add_u32 s{S_T}, s{SA_SL}, {KVST}")
            a(f"s_cmp_eq_u32 s{S_T}, {3*KVST}")
            a(f"s_cselect_b32 s{SA_SL}, 0, s{S_T}")
            a(f"s_add_u32 s{S_T}, s{SA_SL}, {KV0}")
            a(f"v_add_u32 v{A_NK}, s{S_T}, v{A_L16}")
            a(f"s_add_u32 s{S_T}, s{S_T}, {KV_X}")
            a(f"v_add_u32 v{A_NX}, s{S_T}, v{A_L4}")
        for kt in range(4):
            for b in range(2):
                j = 2*kt + b
                pre, mid = [], []
                if b == 0:
                    if kt < 3:
                        pre = v_reads(kt % 2, kt) + k_reads((kt+1) % 2, kt+1, A_RK, A_RX)
                    else:
                        pre = v_reads(kt % 2, kt)
                        if not last:
                            mid = ["s_waitcnt lgkmcnt(0)", "s_barrier"] + k_reads(0, 0, A_NK, A_NX)
                        else:
                            mid = ["s_barrier"]
                else:
                    pre = ["s_waitcnt lgkmcnt(0)"]
                do_qk = not (last and j == 7)
                do_pv = not (first and j == 0)
                st = attn_step(j, kt, b, do_qk, do_pv, pre, mid)
                if j == 0 and first:
                    st = ["s_nop 7"] + st
                a.extend(st)
        if not last:
            a(f"v_mov_b32 v{A_RK}, v{A_NK}")
            a(f"v_mov_b32 v{A_RX}, v{A_NX}")
            a(f"v_add_u32 v{A_RV}, {KV_V - KV_K}, v{A_NK}")
    chunk(True, False)
    a.label("k2_aloop")
    chunk(False, False)
    a(f"s_add_u32 s{SA_CNT}, s{SA_CNT}, 1")
    a(f"s_cmp_lt_u32 s{SA_CNT}, 14")
    a("s_cbranch_scc1 k2_aloop")
    chunk(False, True)
    stamp_at(a, 4)
    a("s_nop 1")
    a.extend(pv_mfmas(1, 1, 1))
    a("s_nop 15")
    a("s_nop 3")
    T = A_TMP
    for b in range(2):
        O = A_O[b]
        a(f"v_mov_b32 v{T}, v{O+10}")
        a(f"v_mov_b32 v{T+1}, v{O+10}")
        a("s_nop 1")
        a(f"v_permlane32_swap_b32 v{T+1}, v{T}")
        a("s_nop 1")
        a(f"v_rcp_f32 v{T+1}, v{T+1}")
        a("s_nop 0")
        for k in range(10):
            a(f"v_mul_f32 v{O+k}, v{O+k}, v{T+1}")
        for k in range(4):
            a(f"v_cvt_pk_bf16_f32 v{T+4+k}, v{O+2*k}, v{O+2*k+1}")
        a(f"v_cvt_pk_bf16_f32 v{T+8}, v{O+8}, v{O+9}")
        a(f"s_lshl_b32 s{S_T}, s{SA_H}, 6")
        a(f"s_add_u32 s{S_T}, s{S_T}, s{SA_TBQ}")
        a(f"s_lshl_b32 s{S_T}, s{S_T}, 10")
        a(f"s_add_u32 s{S_T}, s{S_T}, {WS_OF + b*1024}")
        a(f"buffer_store_dwordx4 {vr(T+4,4)}, v{A_L16}, s[{S_WS}:{S_WS+3}], s{S_T} offen")
        a(f"s_lshl_b32 s{S_T}, s{SA_H}, 13")
        a(f"s_lshl_b32 s{S_T2}, s{SA_TBQ}, 7")
        a(f"s_add_u32 s{S_T}, s{S_T}, s{S_T2}")
        a(f"s_add_u32 s{S_T}, s{S_T}, {WS_OX + b*128}")
        a(f"v_mov_b32 v{T+9}, 0x7ffffff0")
        a("v_cmp_gt_u32 vcc, 32, v1")
        a("s_nop 1")
        a(f"v_cndmask_b32 v{T+9}, v{T+9}, v{A_L4}, vcc")
        a(f"buffer_store_dword v{T+8}, v{T+9}, s[{S_WS}:{S_WS+3}], s{S_T} offen")
        a("s_nop 1")
    a("s_waitcnt vmcnt(0)")
    stamp_at(a, 5)
    stamp_out(a, 6, 6)
    a("s_endpgm")

G_ACC = 64
G_RING = 208
G_H = 224
G_WP = 2
G_KP, G_VP, G_TR, G_TRC, G_L16, G_XP = 11, 12, 13, 14, 15, 16
SG_TBL, SG_KH, SG_S, SG_NH = 24, 25, 26, 27
SG_WOFF, SG_HOFF, SG_KOFF, SG_XOFF, SG_VOFF = 28, 29, 30, 31, 32
SG_WST, SG_KVS, SG_CUR, SG_CNT, SG_SO = 33, 34, 35, 36, 37
SG_VMASK = 38
SG_XMASK = 40
SG_H = 42

def g_dma_w():
    out = []
    for i in range(9):
        out.append([f"s_add_u32 m0, s{SG_WST}, {i*1024}", "s_nop 0",
                    f"buffer_load_dwordx4 v{G_WP+i}, s[{S_WD}:{S_WD+3}], s{SG_WOFF} offen lds"])
    return out
def g_dma_kv():
    out = []
    for g in range(4):
        h2, half = g // 2, g % 2
        out.append([f"s_add_u32 m0, s{SG_KVS}, {g*256}",
                    f"s_add_u32 s{SG_SO}, s{SG_KOFF}, {h2*4*8192 + half*64}",
                    f"buffer_load_dword v{G_KP}, s[{S_WS}:{S_WS+3}], s{SG_SO} offen lds"])
    for q in range(2):
        out.append([f"s_add_u32 m0, s{SG_KVS}, s{SG_H}",
                    f"s_add_u32 m0, m0, {q*1024}",
                    f"s_add_u32 s{SG_SO}, s{SG_VOFF}, {q*576}",
                    f"s_mov_b64 exec, s[{SG_VMASK}:{SG_VMASK+1}]",
                    f"buffer_load_dwordx4 v{G_VP}, s[{S_WS}:{S_WS+3}], s{SG_SO} offen lds",
                    "s_mov_b64 exec, -1"])
    out.append([f"s_add_u32 m0, s{SG_KVS}, s{SG_H+1}",
                f"s_mov_b64 exec, s[{SG_XMASK}:{SG_XMASK+1}]",
                f"buffer_load_dword v{G_XP}, s[{S_WS}:{S_WS+3}], s{SG_XOFF} offen lds",
                "s_mov_b64 exec, -1"])
    return out
def g_hload(slot):
    return [f"buffer_load_dwordx4 {vr(G_H + 8*slot, 4)}, v{G_L16}, s[{S_WS}:{S_WS+3}], s{SG_HOFF} offen",
            f"buffer_load_dwordx4 {vr(G_H + 8*slot + 4, 4)}, v{G_L16}, s[{S_WS}:{S_WS+3}], s{SG_HOFF} offen offset:1024"]
def g_adv_w(a):
    a(f"s_add_u32 s{SG_WOFF}, s{SG_WOFF}, {32*1152}")
def rot(a, sreg, step, n, base_sreg=None):
    pass

def gen_gemm(a):
    a(f"s_sub_u32 s{S_W}, s{S_W}, 4")
    a(f"s_and_b32 s{SG_TBL}, s{S_W}, 1")
    a(f"s_lshr_b32 s{SG_KH}, s{S_W}, 1")
    a(f"s_lshr_b32 s{SG_S}, s{S_XCD}, 1")
    a(f"s_and_b32 s{SG_NH}, s{S_XCD}, 1")
    a(f"s_lshl_b32 s{S_T}, s{S_XCD}, 2")
    a(f"s_and_b32 s{S_T2}, s{S_SLOT}, 3")
    a(f"s_add_u32 s43, s{S_T}, s{S_T2}")
    a("s_mov_b32 s44, s43")
    a(f"v_lshlrev_b32 v{G_L16}, 4, v1")
    for i in range(9):
        a(f"v_add_u32 v17, {64*i}, v1")
        a("v_mul_u32_u24 v18, 1821, v17")
        a("v_lshrrev_b32 v18, 16, v18")
        a("v_mul_u32_u24 v19, 36, v18")
        a("v_sub_u32 v17, v17, v19")
        a("v_mul_u32_u24 v18, 1152, v18")
        a(f"v_lshl_add_u32 v{G_WP+i}, v17, 4, v18")
    a("v_and_b32 v17, 3, v1")
    a("v_lshlrev_b32 v17, 13, v17")
    a("v_lshrrev_b32 v18, 2, v1")
    a(f"v_lshl_add_u32 v{G_KP}, v18, 2, v17")
    a("v_and_b32 v17, 31, v1")
    a("v_lshrrev_b32 v18, 5, v1")
    a("v_mul_u32_u24 v18, 18, v18")
    a("v_add_u32 v18, v18, v17")
    a(f"v_lshlrev_b32 v{G_VP}, 4, v18")
    a("v_cmp_gt_u32 vcc, 18, v17")
    a("s_nop 1")
    a(f"s_mov_b64 s[{SG_VMASK}:{SG_VMASK+1}], vcc")
    a(f"s_mov_b32 s{SG_XMASK}, -1")
    a(f"s_mov_b32 s{SG_XMASK+1}, 0")
    a(f"v_lshlrev_b32 v{G_XP}, 2, v1")
    a("v_and_b32 v17, 15, v1")
    a("v_lshrrev_b32 v18, 2, v17")
    a("v_and_b32 v17, 3, v17")
    a("v_lshlrev_b32 v17, 3, v17")
    a("v_lshrrev_b32 v19, 5, v1")
    a("v_lshl_add_u32 v18, v19, 2, v18")
    a("v_mul_u32_u24 v18, 576, v18")
    a("v_bfe_u32 v19, v1, 4, 1")
    a("v_lshl_add_u32 v17, v19, 5, v17")
    a(f"v_add_u32 v{G_TR}, v18, v17")
    a(f"s_mul_i32 s{S_T}, s{SG_KH}, 18432")
    a(f"v_add_u32 v{G_TR}, s{S_T}, v{G_TR}")
    a(f"s_mul_i32 s{SG_WOFF}, s{SG_S}, 1152")
    a(f"s_mul_i32 s{S_T}, s{SG_KH}, 576")
    a(f"s_add_u32 s{SG_WOFF}, s{SG_WOFF}, s{S_T}")
    a(f"s_lshl_b32 s{S_T}, s{SG_TBL}, 4")
    a(f"s_add_u32 s{SG_WOFF}, s{SG_WOFF}, s{S_T}")
    a(f"s_mul_i32 s{SG_WOFF}, s{SG_WOFF}, 1152")
    a(f"s_mul_i32 s{S_T}, s{SG_NH}, 576")
    a(f"s_add_u32 s{SG_WOFF}, s{SG_WOFF}, s{S_T}")
    a(f"s_mul_i32 s45, s{SG_KH}, 18432")
    a(f"s_mul_i32 s{S_T}, s{SG_TBL}, 9216")
    a(f"s_add_u32 s45, s45, s{S_T}")
    a(f"s_lshl_b32 s{SG_HOFF}, s{S_SLOT}, 1")
    a(f"s_add_u32 s{SG_HOFF}, s{SG_HOFF}, s{SG_TBL}")
    a(f"s_mov_b32 s46, s{SG_HOFF}")
    a(f"s_mul_i32 s{SG_HOFF}, s{SG_HOFF}, 288")
    a(f"s_mul_i32 s{S_T}, s{SG_S}, 72")
    a(f"s_add_u32 s{SG_HOFF}, s{SG_HOFF}, s{S_T}")
    a(f"s_mul_i32 s{S_T}, s{SG_KH}, 36")
    a(f"s_add_u32 s{SG_HOFF}, s{SG_HOFF}, s{S_T}")
    a(f"s_lshl_b32 s{SG_HOFF}, s{SG_HOFF}, 10")
    a(f"s_add_u32 s{SG_HOFF}, s{SG_HOFF}, {WS_HF}")
    a(f"s_mul_i32 s{SG_KOFF}, s44, {9*8192}")
    a(f"s_lshl_b32 s{S_T}, s{S_W}, 7")
    a(f"s_add_u32 s{SG_KOFF}, s{SG_KOFF}, s{S_T}")
    a(f"s_add_u32 s{SG_KOFF}, s{SG_KOFF}, {WS_QKP + 288*8192}")
    a(f"s_add_u32 s{SG_XOFF}, s{SG_KOFF}, {8*8192}")
    a(f"s_lshl_b32 s{SG_VOFF}, s44, 7")
    a(f"s_lshl_b32 s{S_T}, s{S_W}, 1")
    a(f"s_add_u32 s{SG_VOFF}, s{SG_VOFF}, s{S_T}")
    a(f"s_mul_i32 s{SG_VOFF}, s{SG_VOFF}, 576")
    a(f"s_add_u32 s{SG_VOFF}, s{SG_VOFF}, {WS_VF}")
    a(f"s_lshl_b32 s{S_T}, s{S_W}, 10")
    a(f"s_add_u32 s{SG_H}, s{S_T}, {KV_V}")
    a(f"s_mul_i32 s{S_T2}, s{S_W}, 896")
    a(f"s_sub_u32 s{SG_H+1}, {KV_X}, s{S_T2}")
    a(f"s_mov_b32 s47, s{S_T}")
    def adv_kv():
        return [f"s_add_u32 s{SG_KOFF}, s{SG_KOFF}, 512", f"s_add_u32 s{SG_XOFF}, s{SG_XOFF}, 512",
                f"s_add_u32 s{SG_VOFF}, s{SG_VOFF}, {8*576}"]
    def set_kvslot(idx_expr_sreg=None, const=None):
        pass
    def next_rot(sreg, step):
        return [f"s_add_u32 s{sreg}, s{sreg}, {step}", f"s_cmp_eq_u32 s{sreg}, {3*step}", f"s_cselect_b32 s{sreg}, 0, s{sreg}"]
    a("s_mov_b32 s48, 0"); a("s_mov_b32 s49, 0"); a(f"s_mov_b32 s{SG_CUR}, 0")
    def issue_w():
        return [[f"s_add_u32 s{SG_WST}, s48, s45"]] + g_dma_w() + [[f"s_add_u32 s{SG_WOFF}, s{SG_WOFF}, {32*1152}"] + next_rot(48, WST)]
    def issue_kv():
        return [[f"s_add_u32 s{SG_KVS}, s49, s47", f"s_add_u32 s{SG_KVS}, s{SG_KVS}, {KV0 + KV_K}"]] + g_dma_kv() + [adv_kv() + next_rot(49, KVST)]
    def issue_h(slot):
        return [g_hload(slot) + [f"s_add_u32 s{SG_HOFF}, s{SG_HOFF}, 2048"]]
    flat = lambda L: [x for g in L for x in g]
    for k in range(144): a(f"v_mov_b32 v{G_ACC+k}, 0")
    a.extend(flat(issue_kv())); a.extend(flat(issue_w())); a.extend(flat(issue_h(0)))
    a.extend(flat(issue_kv())); a.extend(flat(issue_w())); a.extend(flat(issue_h(1)))
    a("s_waitcnt vmcnt(18)")
    stamp_at(a, 1)
    a("s_barrier")
    stamp_at(a, 2)
    def phase(p, do_w, do_kv, hslot):
        groups = []
        if do_kv: groups += issue_kv()
        if do_w: groups += issue_w() + issue_h((hslot + 2) % 3)
        a(f"v_add_u32 v{G_TRC}, s{SG_CUR}, v{G_TR}")
        seq = [(ks, nt) for ks in range(2) for nt in range(9)]
        def rd(i):
            ks, nt = seq[i]
            r = G_RING + 4*(i % 4)
            off = ks*9216 + nt*64
            return [f"ds_read_b64_tr_b16 {vr(r,2)}, v{G_TRC} offset:{off}", f"ds_read_b64_tr_b16 {vr(r+2,2)}, v{G_TRC} offset:{off+4608}"]
        for i in range(3): a.extend(rd(i))
        gi = 0
        for i in range(18):
            ks, nt = seq[i]
            n_out = min(2, 17 - i)
            a(f"s_waitcnt lgkmcnt({2*n_out})")
            r = G_RING + 4*(i % 4)
            acc = vr(G_ACC + 16*nt, 16)
            a(f"v_mfma_f32_32x32x16_bf16 {acc}, {vr(r,4)}, {vr(G_H + 8*hslot + 4*ks, 4)}, {acc}")
            if i + 3 < 18: a.extend(rd(i + 3))
            tgt = (len(groups) * (i + 1) + 17) // 18
            while gi < tgt:
                a.extend(groups[gi]); gi += 1
        a.extend(next_rot(SG_CUR, WST))
    nvm = lambda w, kv: (11 if w else 0) + (7 if kv else 0)
    phase(0, True, False, 0)
    a(f"s_waitcnt vmcnt({nvm(True, False)})")
    a("s_barrier")
    a(f"s_mov_b32 s{SG_CNT}, 0")
    a.label("k2_gloop")
    for q in range(3):
        phase(1 + q, True, True, (1 + q) % 3)
        a(f"s_waitcnt vmcnt({nvm(True, True)})")
        a("s_barrier")
    a(f"s_add_u32 s{SG_CNT}, s{SG_CNT}, 1")
    a(f"s_cmp_lt_u32 s{SG_CNT}, 4")
    a("s_cbranch_scc1 k2_gloop")
    phase(13, True, True, 13 % 3); a(f"s_waitcnt vmcnt({nvm(True, True)})"); a("s_barrier")
    phase(14, True, True, 14 % 3); a(f"s_waitcnt vmcnt({nvm(True, True)})"); a("s_barrier")
    phase(15, True, False, 15 % 3); a(f"s_waitcnt vmcnt({nvm(True, False)})"); a("s_barrier")
    phase(16, False, False, 16 % 3); a("s_waitcnt vmcnt(0)"); a("s_barrier")
    phase(17, False, False, 17 % 3)
    stamp_at(a, 4)
    a("s_nop 15")
    a(f"s_mul_i32 s{S_T}, s{SG_TBL}, 36864")
    a(f"v_add_u32 v17, s{S_T}, v{G_L16}")
    a(f"s_cmp_eq_u32 s{SG_KH}, 0")
    a("s_cbranch_scc1 k2_gred")
    for i in range(36):
        off = i * 1024
        a(f"ds_write_b128 v17, {vr(G_ACC + 4*i, 4)} offset:{off}")
    a("s_waitcnt lgkmcnt(0)")
    a("s_barrier")
    stamp_at(a, 5)
    stamp_out(a, 6, 6)
    a("s_endpgm")
    a.label("k2_gred")
    a("s_barrier")
    a(f"s_lshl_b32 s{S_T}, s{SG_S}, 6")
    a(f"s_add_u32 s{S_T}, s{S_T}, s46")
    a(f"s_mul_i32 s{S_T}, s{S_T}, 18")
    a(f"s_mul_i32 s{S_T2}, s{SG_NH}, 9")
    a(f"s_add_u32 s{S_T}, s{S_T}, s{S_T2}")
    a(f"s_lshl_b32 s{S_T}, s{S_T}, 12")
    a(f"s_add_u32 s{S_T}, s{S_T}, {WS_P}")
    for i in range(36):
        r = G_RING + 4*(i % 4)
        if i < 4:
            pass
    for g in range(9):
        for q in range(4):
            i = 4*g + q
            a(f"ds_read_b128 {vr(G_RING + 4*q, 4)}, v17 offset:{i*1024}")
        for q in range(4):
            i = 4*g + q
            a(f"s_waitcnt lgkmcnt({3-q})")
            for e in range(4):
                a(f"v_add_f32 v{G_ACC+4*i+e}, v{G_ACC+4*i+e}, v{G_RING+4*q+e}")
            a(f"buffer_store_dwordx4 {vr(G_ACC+4*i,4)}, v{G_L16}, s[{S_WS}:{S_WS+3}], s{S_T} offen offset:{q*1024}")
        a(f"s_add_u32 s{S_T}, s{S_T}, 4096")
    a("s_waitcnt vmcnt(0)")
    stamp_at(a, 5)
    stamp_out(a, 6, 6)
    a("s_endpgm")

def gen_k2(stampit=False):
    global STAMP
    STAMP = stampit
    a = Asm()
    name = "k2_attn_kernel"
    a.lines.append(kernel_header(name).rstrip("\n"))
    a("s_cmp_ge_u32 s2, 256")
    a("s_cbranch_scc1 k2_end")
    stamp_at(a, 0)
    a(f"s_load_dwordx2 s[4:5], s[0:1], {KA_WD}")
    a(f"s_load_dwordx2 s[6:7], s[0:1], {KA_WS}")
    a("v_and_b32 v1, 63, v0")
    a("v_lshrrev_b32 v2, 6, v0")
    a("s_nop 0")
    a(f"v_readfirstlane_b32 s{S_W}, v2")
    a("s_nop 3")
    a(f"s_mov_b32 s22, s{S_W}")
    a(f"s_and_b32 s{S_XCD}, s2, 7")
    a(f"s_lshr_b32 s{S_SLOT}, s2, 3")
    a("s_waitcnt lgkmcnt(0)")
    srd(a, S_WD, 4, 4608*576*2)
    srd(a, S_WS, 6, WS_END)
    a(f"s_cmp_ge_u32 s{S_W}, 4")
    a("s_cbranch_scc1 k2_gemm")
    gen_attn(a)
    a.label("k2_gemm")
    gen_gemm(a)
    a.label("k2_end")
    a("s_endpgm")
    return a.text() + kernel_desc(name, 256, 256, 96), name
```

```python
from common import *
from k0 import float_hex
K3_LDS = 2 * 36864
def gen_k3():
    a = Asm()
    name = "k3_out_kernel"
    a.lines.append(kernel_header(name).rstrip("\n"))
    a("s_cmp_ge_u32 s2, 288")
    a("s_cbranch_scc1 k3_end")
    a(f"s_load_dwordx2 s[4:5], s[0:1], {KA_WO}")
    a(f"s_load_dwordx2 s[6:7], s[0:1], {KA_WS}")
    a(f"s_load_dwordx2 s[24:25], s[0:1], {KA_X}")
    a(f"s_load_dwordx2 s[26:27], s[0:1], {KA_OUT}")
    a("v_and_b32 v1, 63, v0")
    a("v_lshrrev_b32 v2, 6, v0")
    a("s_nop 0")
    a("v_readfirstlane_b32 s28, v2")
    a("s_and_b32 s29, s2, 31")
    a("s_lshr_b32 s30, s2, 5")
    a("s_and_b32 s31, s28, 1")
    a("s_lshr_b32 s32, s28, 1")
    a("s_lshl_b32 s33, s29, 1")
    a("s_add_u32 s33, s33, s31")
    a("s_lshl_b32 s34, s30, 1")
    a("s_add_u32 s34, s34, s32")
    a("s_waitcnt lgkmcnt(0)")
    srd(a, 8, 4, 576*576*2)
    srd(a, 12, 6, WS_END)
    srd(a, 16, 24, S_TOK*D*2)
    srd(a, 20, 26, S_TOK*D*2)
    a("v_lshrrev_b32 v3, 2, v1")
    a("v_and_b32 v4, 3, v1")
    a("v_lshlrev_b32 v4, 4, v4")
    a("v_mul_u32_u24 v5, 1152, v3")
    a("v_add_u32 v5, v5, v4")
    a("v_lshrrev_b32 v6, 3, v3")
    a("v_lshlrev_b32 v6, 2, v6")
    a("v_and_b32 v7, 3, v3")
    a("v_add_u32 v6, v6, v7")
    a("v_bfe_u32 v7, v3, 2, 1")
    a("v_lshlrev_b32 v7, 2, v7")
    a("v_lshrrev_b32 v8, 1, v6")
    a("v_add_u32 v7, v7, v8")
    a("v_mul_u32_u24 v7, 18, v7")
    a("v_and_b32 v6, 1, v6")
    a("v_add3_u32 v7, v7, v6, 16")
    a("v_mul_u32_u24 v6, 1152, v7")
    a("v_add_u32 v6, v6, v4")
    a("s_mul_i32 s35, s28, 9")
    a("s_lshl_b32 s36, s30, 7")
    for i in range(9):
        a(f"s_add_u32 s37, s35, {i}")
        a("s_cmp_lt_u32 s37, 32")
        a(f"s_cbranch_scc0 k3_x{i}")
        a(f"s_mul_i32 s38, s37, {18*1152}")
        a("s_add_u32 s38, s38, s36")
        a("s_lshl_b32 m0, s37, 10")
        a("s_nop 0")
        a("buffer_load_dwordx4 v5, s[8:11], s38 offen lds")
        a("s_add_u32 m0, m0, 36864")
        a("s_add_u32 s38, s38, 64")
        a("buffer_load_dwordx4 v5, s[8:11], s38 offen lds")
        a(f"s_branch k3_y{i}")
        a.label(f"k3_x{i}")
        a("s_sub_u32 s38, s37, 32")
        a(f"s_mul_i32 s38, s38, {18*8*1152}")
        a("s_add_u32 s38, s38, s36")
        a("s_lshl_b32 m0, s37, 10")
        a("s_nop 0")
        a("buffer_load_dwordx4 v6, s[8:11], s38 offen lds")
        a("s_add_u32 m0, m0, 36864")
        a("s_add_u32 s38, s38, 64")
        a("buffer_load_dwordx4 v6, s[8:11], s38 offen lds")
        a.label(f"k3_y{i}")
    a("v_lshlrev_b32 v9, 4, v1")
    a("s_lshl_b32 s37, s33, 10")
    a(f"s_add_u32 s37, s37, {WS_OF}")
    for ks in range(32):
        a(f"buffer_load_dwordx4 {vr(64+4*ks,4)}, v9, s[12:15], s37 offen")
        a(f"s_add_u32 s37, s37, {64*1024}")
    a("v_and_b32 v10, 31, v1")
    a("v_lshlrev_b32 v10, 2, v10")
    a("v_lshrrev_b32 v11, 5, v1")
    a("v_lshl_add_u32 v10, v11, 15, v10")
    a("s_lshl_b32 s37, s33, 7")
    a(f"s_add_u32 s37, s37, {WS_OX}")
    for e in range(4):
        for q in range(4):
            a(f"s_add_u32 s38, s37, {(8*e+q)*8192}")
            a(f"buffer_load_dword v{192+4*e+q}, v10, s[12:15], s38 offen")
    pregs = [208, 224, 240, 16]
    for sidx in range(4):
        a(f"s_mul_i32 s37, s33, 18")
        a("s_add_u32 s37, s37, s34")
        a("s_lshl_b32 s37, s37, 12")
        a(f"s_add_u32 s37, s37, {WS_P + sidx*64*18*4096}")
        for j in range(4):
            a(f"buffer_load_dwordx4 {vr(pregs[sidx]+4*j,4)}, v9, s[12:15], s37 offen offset:{j*1024}")
    a("v_and_b32 v12, 31, v1")
    a("s_lshl_b32 s37, s33, 5")
    a("v_add_u32 v12, s37, v12")
    a("v_mul_u32_u24 v12, 1152, v12")
    a("v_lshl_add_u32 v12, v11, 3, v12")
    a("s_lshl_b32 s39, s34, 6")
    for j in range(4):
        a(f"buffer_load_dwordx2 {vr(32+2*j,2)}, v12, s[16:19], s39 offen offset:{16*j}")
    a("v_and_b32 v13, 15, v1")
    a("v_lshrrev_b32 v14, 2, v13")
    a("v_and_b32 v13, 3, v13")
    a("v_lshlrev_b32 v13, 3, v13")
    a("v_lshl_add_u32 v14, v11, 2, v14")
    a("v_lshl_add_u32 v13, v14, 6, v13")
    a("v_bfe_u32 v14, v1, 4, 1")
    a("v_lshl_add_u32 v13, v14, 5, v13")
    a("s_mul_i32 s37, s32, 36864")
    a("v_add_u32 v13, s37, v13")
    a("s_waitcnt vmcnt(52)")
    a("s_barrier")
    def rd(ks):
        r = 56 + 4*(ks % 2)
        return [f"ds_read_b64_tr_b16 {vr(r,2)}, v13 offset:{ks*1024}", f"ds_read_b64_tr_b16 {vr(r+2,2)}, v13 offset:{ks*1024+512}"]
    a.extend(rd(0))
    for ks in range(36):
        if ks + 1 < 36: a.extend(rd(ks + 1))
        a(f"s_waitcnt lgkmcnt({2 if ks+1 < 36 else 0})")
        if ks < 32:
            n = 86 - (19 + ks)
            if n <= 63 and ks % 4 == 0:
                n2 = max(86 - (19 + ks + 3), 0)
                a(f"s_waitcnt vmcnt({n2})")
            b = vr(64+4*ks, 4)
        else:
            if ks == 32: a("s_waitcnt vmcnt(20)")
            b = vr(192+4*(ks-32), 4)
        c = "0" if ks == 0 else "v[40:55]"
        a(f"v_mfma_f32_32x32x16_bf16 v[40:55], {vr(56+4*(ks%2),4)}, {b}, {c}")
    a("s_waitcnt vmcnt(0)")
    a("s_nop 15")
    for k in range(16):
        a(f"v_add_f32 v{208+k}, v{208+k}, v{224+k}")
        a(f"v_add_f32 v{240+k}, v{240+k}, v{16+k}")
    for k in range(16):
        a(f"v_add_f32 v{208+k}, v{208+k}, v{240+k}")
    for j in range(4):
        a(f"v_lshlrev_b32 v{224+4*j}, 16, v{32+2*j}")
        a(f"v_and_b32 v{225+4*j}, 0xffff0000, v{32+2*j}")
        a(f"v_lshlrev_b32 v{226+4*j}, 16, v{33+2*j}")
        a(f"v_and_b32 v{227+4*j}, 0xffff0000, v{33+2*j}")
    for k in range(16):
        a(f"v_add_f32 v{208+k}, v{208+k}, v{224+k}")
    for k in range(16):
        a(f"v_add_f32 v{208+k}, v{208+k}, v{40+k}")
    for k in range(8):
        a(f"v_cvt_pk_bf16_f32 v{240+k}, v{208+2*k}, v{209+2*k}")
    for j in range(4):
        a(f"buffer_store_dwordx2 {vr(240+2*j,2)}, v12, s[20:23], s39 offen offset:{16*j}")
    a("s_waitcnt vmcnt(0)")
    a.label("k3_end")
    a("s_endpgm")
    return a.text() + kernel_desc(name, 256, 256, 48), name
```

```python
import sys
from common import *
from k0 import gen_k0
from k1 import gen_k1, K1_LDS
from k2 import gen_k2, K2_LDS
from k3 import gen_k3, K3_LDS
HEADER = open('parallel_sum__softmax_full_mha__swiglu_ffn__prompt.s.ref').read().split("; Override launch")[0]
def build(kernels, launches):
    s = HEADER
    for (n,g,b,l) in launches:
        s += f"; @launch kernel={n} grid=({g},1,1) block=({b},1,1) lds={l}\n"
    s += '.amdgcn_target "amdgcn-amd-amdhsa--gfx950"\n.text\n'
    for k in kernels: s += k
    return s
if __name__ == "__main__":
    ks = []; launches = []
    t, n = gen_k0(); ks.append(t); launches.append((n,256,256,0))
    t, n = gen_k1(stampit=('stamp' in sys.argv), fake16=('fake16' in sys.argv)); ks.append(t); launches.append((n,256,256,K1_LDS))
    t, n = gen_k2(stampit=('stamp' in sys.argv)); ks.append(t); launches.append((n,256,512,K2_LDS))
    t, n = gen_k3(); ks.append(t); launches.append((n,288,256,K3_LDS))
    out = sys.argv[1] if len(sys.argv) > 1 else "out.s"
    open(out, "w").write(build(ks, launches))
    print("wrote", out)
```

```python
S_TOK = 2048
D = 576
F = 4608
H = 32
DH = 18
WS_XF  = 0x0
WS_QKP = 0x240000
WS_VF  = 0x6C0000
WS_OF  = 0x900000
WS_OX  = 0xB00000
WS_HF  = 0xC00000
WS_P   = 0x1E00000
WS_END = 0x3000000
KA_X, KA_WQKV, KA_WO, KA_BX, KA_WG, KA_WU, KA_WD, KA_OUT, KA_DBG, KA_WS = [8*i for i in range(10)]

class Asm:
    def __init__(self):
        self.lines = []
    def __call__(self, s=""):
        for l in s.split("\n"):
            l = l.strip()
            if l: self.lines.append(l)
    def label(self, l): self.lines.append(l + ":")
    def extend(self, lst):
        for l in lst: self(l)
    def text(self):
        out = []
        for l in self.lines:
            out.append(l if l.endswith(":") or l.startswith(".") else "  " + l)
        return "\n".join(out) + "\n"

def vr(base, n=1):
    return f"v{base}" if n == 1 else f"v[{base}:{base+n-1}]"
def ar(base, n=1):
    return f"a{base}" if n == 1 else f"a[{base}:{base+n-1}]"
def sr(base, n=1):
    return f"s{base}" if n == 1 else f"s[{base}:{base+n-1}]"

def srd(a, sreg, ptr, size):
    a(f"s_mov_b32 s{sreg}, s{ptr}")
    a(f"s_and_b32 s{sreg+1}, s{ptr+1}, 0xffff")
    a(f"s_mov_b32 s{sreg+2}, {size}")
    a(f"s_mov_b32 s{sreg+3}, 0x20000")

def kernel_header(name):
    return f".globl {name}\n.p2align 8\n.type {name},@function\n{name}:\n"

def kernel_desc(name, vgpr, accum, sgpr=100):
    return f""".section .rodata,"a"
.p2align 6
.amdhsa_kernel {name}
  .amdhsa_next_free_vgpr {vgpr}
  .amdhsa_next_free_sgpr {sgpr}
  .amdhsa_accum_offset {accum}
  .amdhsa_group_segment_fixed_size 0
  .amdhsa_kernarg_size 80
  .amdhsa_user_sgpr_count 2
  .amdhsa_user_sgpr_kernarg_segment_ptr 1
  .amdhsa_system_sgpr_workgroup_id_x 1
  .amdhsa_float_denorm_mode_32 3
.end_amdhsa_kernel
.text
"""

def interleave(backbone, fillers, per=None, start=0):
    out = []
    nb = len(backbone) - start
    nf = len(fillers)
    k = 0
    for i, b in enumerate(backbone):
        out.append(b)
        if i >= start:
            tgt = (nf * (i - start + 1) + nb - 1) // nb if per is None else min(nf, per * (i - start + 1))
            while k < tgt:
                out.append(fillers[k]); k += 1
    out.extend(fillers[k:])
    return out

RT_BASE = WS_END + 0x40000
RT = {"on": False}
def rt_begin(a, kidx):
    if RT["on"]: a("s_memrealtime s[96:97]")
def rt_end(a, kidx, wsptr, wave_sreg):
    if not RT["on"]: return
    a("s_memrealtime s[98:99]")
    a("s_waitcnt lgkmcnt(0)")
    a("s_lshl_b32 s4, s2, 3")
    a(f"s_add_u32 s4, s4, s{wave_sreg}")
    a("s_lshl_b32 s4, s4, 3")
    a(f"s_add_u32 s4, s4, {RT_BASE + kidx*0x8000}")
    a("v_mov_b32 v12, s4")
    a("v_mov_b32 v14, s96")
    a("v_mov_b32 v15, s98")
    a(f"global_store_dwordx2 v12, v[14:15], s[{wsptr}:{wsptr+1}]")
    a("s_waitcnt vmcnt(0)")
```

```python
from common import *
PREFETCH = True
def gen_k0():
    a = Asm()
    name = "k0_ln_kernel"
    a.lines.append(kernel_header(name).rstrip("\n"))
    a("s_cmp_ge_u32 s2, 256")
    a("s_cbranch_scc1 k0_end")
    rt_begin(a, 0)
    a(f"s_load_dwordx2 s[4:5], s[0:1], {KA_X}")
    a(f"s_load_dwordx2 s[6:7], s[0:1], {KA_WS}")
    if PREFETCH:
        a(f"s_load_dwordx2 s[24:25], s[0:1], {KA_WQKV}")
        a(f"s_load_dwordx4 s[28:31], s[0:1], {KA_WG}")
    a("v_lshrrev_b32 v1, 5, v0")
    a("v_and_b32 v2, 31, v0")
    a("s_lshl_b32 s3, s2, 3")
    a("v_add_u32 v3, s3, v1")
    a("v_mul_u32_u24 v4, 1152, v3")
    a("v_lshl_add_u32 v4, v2, 4, v4")
    a("v_add_u32 v5, 1024, v4")
    a("v_mov_b32 v6, 0x7ffffff0")
    a("v_cmp_gt_u32 vcc, 8, v2")
    a("s_nop 1")
    a("v_cndmask_b32 v5, v6, v5, vcc")
    a("s_waitcnt lgkmcnt(0)")
    srd(a, 8, 4, S_TOK*D*2)
    srd(a, 12, 6, WS_END)
    a("buffer_load_dwordx4 v[8:11], v4, s[8:11], 0 offen")
    a("buffer_load_dwordx4 v[12:15], v4, s[8:11], 0 offen offset:512")
    a("buffer_load_dwordx4 v[16:19], v5, s[8:11], 0 offen")
    if PREFETCH:
        srd(a, 32, 24, 576*1728*2); srd(a, 36, 28, 576*4608*2); srd(a, 40, 30, 576*4608*2)
        a("s_and_b32 s16, s2, 7")
        a("s_lshr_b32 s17, s2, 3")
        a("s_mul_i32 s18, s17, 18")
        a("s_mul_i32 s19, s18, 9216")
        a("s_mul_i32 s20, s16, 1152")
        a("s_add_u32 s19, s19, s20")
        for r in range(2):
            a(f"v_add_u32 v52, {256*r}, v0")
            a("v_mul_u32_u24 v53, 3641, v52")
            a("v_lshrrev_b32 v53, 16, v53")
            a("v_mul_u32_u24 v54, 18, v53")
            a("v_sub_u32 v54, v52, v54")
            a("v_mul_u32_u24 v53, 9216, v53")
            a("v_lshl_add_u32 v53, v54, 6, v53")
            if r == 1:
                a("v_cmp_gt_u32 vcc, 324, v52")
                a("s_nop 1")
                a("v_cndmask_b32 v53, v6, v53, vcc")
            a(f"buffer_load_dword v{55+2*r}, v53, s[36:39], s19 offen")
            a(f"buffer_load_dword v{56+2*r}, v53, s[40:43], s19 offen")
        a("s_lshl_b32 s20, s16, 9")
        a("s_cmp_eq_u32 s16, 6")
        a("s_cselect_b32 s20, 2944, s20")
        a("s_cmp_eq_u32 s16, 7")
        a("s_cselect_b32 s20, 3200, s20")
        a("s_mul_i32 s19, s18, 3456")
        a("s_add_u32 s19, s19, s20")
        a("v_lshrrev_b32 v53, 3, v0")
        a("v_and_b32 v54, 7, v0")
        a("v_mul_u32_u24 v53, 3456, v53")
        a("v_lshl_add_u32 v53, v54, 6, v53")
        a("v_cmp_gt_u32 vcc, 144, v0")
        a("s_nop 1")
        a("v_cndmask_b32 v53, v6, v53, vcc")
        a("buffer_load_dword v59, v53, s[32:35], s19 offen")
        a("v_cmp_gt_u32 vcc, 8, v2")
    a("v_lshrrev_b32 v44, 4, v3")
    a("v_mul_u32_u24 v44, 18, v44")
    a("v_lshrrev_b32 v45, 2, v2")
    a("v_add_u32 v44, v44, v45")
    a("v_lshlrev_b32 v44, 6, v44")
    a("v_and_b32 v45, 3, v2")
    a("v_lshlrev_b32 v45, 4, v45")
    a("v_and_b32 v46, 15, v3")
    a("v_add3_u32 v44, v44, v45, v46")
    a("v_lshlrev_b32 v44, 4, v44")
    a("v_add_u32 v45, 8192, v44")
    a("v_add_u32 v46, 16384, v44")
    a("v_cndmask_b32 v46, v6, v46, vcc")
    a(f"s_waitcnt vmcnt({5 if PREFETCH else 0})")
    for q in range(12):
        a(f"v_lshlrev_b32 v{20+2*q}, 16, v{8+q}")
        a(f"v_and_b32 v{21+2*q}, 0xffff0000, v{8+q}")
    a("v_add_f32 v47, v20, v21")
    for q in range(2, 24):
        a(f"v_add_f32 v47, v47, v{20+q}")
    def reduce32(reg):
        for x in (16, 8, 4, 2, 1):
            a(f"ds_swizzle_b32 v48, v{reg} offset:{(x<<10)|0x1f}")
            a("s_waitcnt lgkmcnt(0)")
            a(f"v_add_f32 v{reg}, v{reg}, v48")
    reduce32(47)
    a(f"v_mul_f32 v47, {float_hex(1.0/576)}, v47")
    for q in range(24):
        a(f"v_sub_f32 v{20+q}, v{20+q}, v47")
    for q in range(16, 24):
        a(f"v_cndmask_b32 v{20+q}, 0, v{20+q}, vcc")
    a("v_mul_f32 v49, v20, v20")
    for q in range(1, 24):
        a(f"v_fmac_f32 v49, v{20+q}, v{20+q}")
    reduce32(49)
    a(f"v_mov_b32 v50, {float_hex(1e-5)}")
    a(f"v_fmac_f32 v50, {float_hex(1.0/576)}, v49")
    a("v_rsq_f32 v50, v50")
    a("s_nop 0")
    a(f"v_mul_f32 v50, {float_hex(1.4426950408889634)}, v50")
    for q in range(24):
        a(f"v_mul_f32 v{20+q}, v{20+q}, v50")
    for q in range(12):
        a(f"v_cvt_pk_bf16_f32 v{8+q}, v{20+2*q}, v{21+2*q}")
    a("buffer_store_dwordx4 v[8:11], v44, s[12:15], 0 offen")
    a("buffer_store_dwordx4 v[12:15], v45, s[12:15], 0 offen")
    a("buffer_store_dwordx4 v[16:19], v46, s[12:15], 0 offen")
    a("s_waitcnt vmcnt(0)")
    if RT["on"]:
        a("v_lshrrev_b32 v1, 6, v0"); a("s_nop 0"); a("v_readfirstlane_b32 s20, v1")
    rt_end(a, 0, 6, 20)
    a.label("k0_end")
    a("s_endpgm")
    return a.text() + kernel_desc(name, 64, 64, 100 if RT['on'] else 48), name

import struct
def float_hex(x):
    return "0x%08x" % struct.unpack("<I", struct.pack("<f", x))[0]
```

```python
from common import *
from k0 import float_hex

LOG2E = 1.4426950408889634
QSCALE2 = (18 ** -0.5) / LOG2E
STG = 12288
REG = 6 * STG
K1_LDS = 2 * REG
STAMP = False
EPI_BUDGET = 560
PREFETCH_WD = True

V_LANE = 1
V_DF = 2
V_DQA, V_DQB = 3, 4
V_TQ = 5
V_TF0, V_TF1 = 9, 10
V_CUR, V_NXT = 11, 12
V_HP = 13
V_QP = 14
V_L16 = 8 + 8
RING = 16
NRING = 6
ACC = [40, 72, 104, 136, 168]
TMP = 200
XV = 224
S_WQ, S_WF, S_WS = 8, 12, 16
S_W, S_G, S_MT, S_T0, S_T1 = 20, 21, 22, 23, 24
S_SOFF, S_TMP, S_TMP2, S_TMP3 = 25, 26, 27, 28
S_HOFF, S_HOFF2 = 29, 30
S_COL = 31
S_FROW = 32
S_FLDS = 33
S_QROW = 34
S_QLDS = 35
S_SCALE = 36
S_QKOFF = 37
S_TB = 38
S_XOFF = 39
S_LOOP = 40
S_STEP = 41
S_REGC = 42
S_DREG = 43
S_TAB = 48
S_HLAST = 44
S_D4 = 45
STB = 66

def stamp_at(a, i):
    if STAMP: a(f"s_memtime s[{STB+2*i}:{STB+1+2*i}]")
def stamp_out(a, n):
    if not STAMP: return
    a("s_waitcnt lgkmcnt(0)")
    a("s_lshl_b32 s4, s2, 2")
    a(f"s_add_u32 s4, s4, s{S_W}")
    a("s_lshl_b32 s4, s4, 6")
    a(f"s_add_u32 s4, s4, {WS_END}")
    a("v_mov_b32 v12, s4")
    for i in range(n):
        a(f"v_mov_b32 v13, s{STB+2*i}")
        a(f"global_store_dword v12, v13, s[46:47] offset:{4*i}")

def xfrag(T, s):
    idx = T * 18 + s
    if idx < 64: return ar(4 * idx, 4)
    return vr(XV + 4 * (idx - 64), 4)

def accr(aset, a, T): return aset + 16 * a + 4 * T

def mfma(kind, aset, a, T, s, ring_idx):
    w = vr(RING + 4 * (ring_idx % NRING), 4)
    x = xfrag(T, s)
    d = vr(accr(aset, a, T), 4)
    c = "0" if s == 0 else d
    if kind == "v": return f"v_mfma_f32_16x16x32_bf16 {d}, {x}, {w}, {c}"
    return f"v_mfma_f32_16x16x32_bf16 {d}, {w}, {x}, {c}"

def rd_ffn(ring_idx, base_reg, a, s):
    r = RING + 4 * (ring_idx % NRING)
    j, ss = s // 3, s % 3
    off = (j % 3) * STG + a * 6144 + ss * 32 * 64
    return [f"ds_read_b64_tr_b16 {vr(r,2)}, v{base_reg} offset:{off}",
            f"ds_read_b64_tr_b16 {vr(r+2,2)}, v{base_reg} offset:{off + 256}"]
def rd_qkv(ring_idx, z, s):
    r = RING + 4 * (ring_idx % NRING)
    j, ss = s // 3, s % 3
    off = (j % 3) * STG + ss * 32 * 128
    return [f"ds_read_b64_tr_b16 {vr(r,2)}, v{V_TQ+z} offset:{off}",
            f"ds_read_b64_tr_b16 {vr(r+2,2)}, v{V_TQ+z} offset:{off + 512}"]

def cost(ins):
    op = ins.split()[0]
    if op in ("v_exp_f32", "v_rcp_f32", "v_exp_f32_e64", "v_rsq_f32"): return 8
    return 4

def dma_ffn_stage(j, region, pair, vpat=None):
    vpat = V_DF if pair % 2 == 0 else V_DF2
    out = [[f"s_add_u32 m0, s{S_FLDS}, {region + j*STG}"]]
    for i in range(3):
        out.append([f"buffer_load_dwordx4 v{vpat}, s[{S_WF}:{S_WF+3}], s{S_TAB + 3*j + i} offen offset:{1024*i} lds ; tag=p{pair}b{j}"])
    return out
def dma_qkv_stage(j):
    out = []
    for i in range(3):
        pat = V_DQA if i % 2 == 0 else V_DQB
        out.append([f"s_add_u32 m0, s{S_QLDS}, {j*STG + i*1024}",
                    f"s_add_u32 s{S_SOFF}, s{S_QROW}, {(96*j + 8*i) * 3456}",
                    f"buffer_load_dwordx4 v{pat}, s[{S_WQ}:{S_WQ+3}], s{S_SOFF} offen lds"])
    return out
def xload_stage(j):
    out = []
    for T in range(4):
        for ss in range(3):
            g = []
            if ss == 0: g.append(f"s_add_u32 s{S_TMP3}, s{S_XOFF}, {(T * 18 + 3*j) * 1024}")
            g.append(f"buffer_load_dwordx4 {xfrag(T, 3*j+ss)}, v{V_L16R}, s[{S_WS}:{S_WS+3}], s{S_TMP3} offen offset:{ss*1024}")
            out.append(g)
    return out
V_L16R = 15
V_TF8 = 14
V_DF2 = 0
NPRE = 2


def epi_ffn(aset, last=False):
    out = []
    if last: out.append(f"s_mov_b32 s{S_HOFF}, s{S_HLAST}")
    for half in range(2):
        Ts = (2 * half, 2 * half + 1)
        t = TMP + 8 * half
        regs = [(accr(aset, 0, T) + i, accr(aset, 1, T) + i) for T in Ts for i in range(4)]
        for k, (g, u) in enumerate(regs): out.append(f"v_exp_f32 v{t+k}, -v{g}")
        for k, (g, u) in enumerate(regs): out.append(f"v_mul_f32 v{g}, v{g}, v{u}")
        for k, (g, u) in enumerate(regs): out.append(f"v_add_f32 v{t+k}, 1.0, v{t+k}")
        for k, (g, u) in enumerate(regs): out.append(f"v_rcp_f32 v{t+k}, v{t+k}")
        for k, (g, u) in enumerate(regs): out.append(f"v_mul_f32 v{g}, v{g}, v{t+k}")
        p = TMP + 16 + 4 * half
        for q, T in enumerate(Ts):
            g = accr(aset, 0, T)
            out.append(f"v_cvt_pk_bf16_f32 v{p+2*q}, v{g}, v{g+1}")
            out.append(f"v_cvt_pk_bf16_f32 v{p+2*q+1}, v{g+2}, v{g+3}")
        so = S_HOFF if half == 0 else S_HOFF2
        if half == 1: out.append(f"s_add_u32 s{S_HOFF2}, s{S_HOFF}, {288*1024}")
        for q, T in enumerate(Ts):
            out.append(f"buffer_store_dwordx2 {vr(p+2*q,2)}, v{V_HP}, s[{S_WS}:{S_WS+3}], s{so} offen offset:{q*256}")
    out.append(f"s_add_u32 s{S_HOFF}, s{S_HOFF}, 1024")
    return out

def epi_qk(aset):
    out = []
    for a_ in range(2):
        for T in range(4):
            R = accr(aset, a_, T)
            for i in range(4): out.append(f"v_mul_f32 v{R+i}, s{S_SCALE}, v{R+i}")
        for T in range(4):
            R = accr(aset, a_, T)
            t = TMP + 8 * a_ + 2 * T
            out.append(f"v_cvt_pk_bf16_f32 v{t}, v{R}, v{R+1}")
            out.append(f"v_cvt_pk_bf16_f32 v{t+1}, v{R+2}, v{R+3}")
        for p in range(2):
            out.append(f"s_add_u32 s{S_TMP2}, s{S_QKOFF}, {(8*a_ + p) * 8192}")
            for T in range(4):
                out.append(f"buffer_store_dword v{TMP + 8*a_ + 2*T + p}, v{V_QP}, s[{S_WS}:{S_WS+3}], s{S_TMP2} offen offset:{64*T}")
    out.append(f"s_add_u32 s{S_QKOFF}, s{S_QKOFF}, {16*8192}")
    return out

def epi_v(aset, pats):
    out = []
    for a_ in range(2):
        for T in range(4):
            R = accr(aset, a_, T)
            t = TMP + 8 * a_ + 2 * T
            out.append(f"v_cvt_pk_bf16_f32 v{t}, v{R}, v{R+1}")
            out.append(f"v_cvt_pk_bf16_f32 v{t+1}, v{R+2}, v{R+3}")
        for T in range(4):
            out.append(f"buffer_store_dwordx2 {vr(TMP + 8*a_ + 2*T, 2)}, v{pats[a_]}, s[{S_WS}:{S_WS+3}], s{S_QKOFF} offen offset:{T*576}")
    return out

def fix_m0(a):
    out = []
    for l in a.lines:
        if out and " lds" in l and l.startswith("buffer_load") and " m0," in out[-1]:
            out.append("s_nop 0")
        out.append(l)
    a.lines = out

class VM:
    def __init__(self): self.n = 0; self.tags = {}
    def issue(self, tag=None):
        self.n += 1
        if tag is not None: self.tags[tag] = self.n
    def wait(self, tag):
        k = self.n - self.tags[tag]
        return f"s_waitcnt vmcnt({min(k, 63)})"

def schedule(mf, fixed, queue, lo=0, hi=None, post=None):
    n = len(mf)
    hi = n if hi is None else hi
    flat = []
    for it in queue:
        if isinstance(it, str): flat.append(it)
        else: flat += it
    total = sum(cost(x) for x in flat)
    out = []
    k = 0; spent = 0
    for g in range(n):
        out.append(mf[g])
        budget = 8
        for x in fixed.get(g, []):
            out.append(x); budget -= cost(x) if not x.startswith("s_barrier") else 0
        if lo <= g < hi:
            target = total * (g - lo + 1) / (hi - lo)
            while k < len(flat) and spent < target + 4:
                c = cost(flat[k])
                if c > budget and not (spent < target - 24): break
                out.append(flat[k]); spent += c; budget -= c; k += 1
                if budget <= 0 and not (spent < target - 24): break
    out += flat[k:]
    return out

def unit_ffn(aset, queue, first_reads_done=True, nxt="same", barrier=None, lo=3, hi=132):
    mf = []; fixed = {}
    base = RI[0]
    for s in range(18):
        for a_ in range(2):
            f = 2 * s + a_
            for T in range(4):
                mf.append(mfma("n", aset, a_, T, s, base + f))
    for f in range(36):
        g0 = 4 * f
        pf = f + 4
        if pf < 36: rd = rd_ffn(base + pf, V_CUR, pf % 2, pf // 2)
        elif nxt: rd = rd_ffn(base + pf, V_NXT, (pf - 36) % 2, (pf - 36) // 2)
        else: rd = []
        if pf == 18:
            fixed.setdefault(g0, []).append(f"v_add_u32 v{V_CUR}, {3*STG}, v{V_CUR}")
        if pf == 36 and barrier:
            fixed.setdefault(g0, []).extend(barrier)
        if rd:
            fixed.setdefault(g0, []).append(rd[0])
            fixed.setdefault(g0 + 1, []).append(rd[1])
        if f % 2 == 1 and (f + 1 < 36 or nxt):
            issued_upto = min(pf, 35) if not nxt else pf
            allow = 2 * (issued_upto - (f + 2))
            fixed.setdefault(g0 + 3, []).append(f"s_waitcnt lgkmcnt({max(allow,0)})")
    RI[0] = base + 36
    return schedule(mf, fixed, queue, lo, hi)
RI = [0]

def gen_k1(stampit=False):
    global STAMP
    STAMP = stampit
    RI[0] = 0
    a = Asm()
    name = "k1_gemm1_kernel"
    a.lines.append(kernel_header(name).rstrip("\n"))
    a("s_cmp_ge_u32 s2, 256")
    a("s_cbranch_scc1 k1_end")
    stamp_at(a, 0)
    rt_begin(a, 1)
    a(f"s_load_dwordx2 s[4:5], s[0:1], {KA_WQKV}")
    a(f"s_load_dwordx4 s[48:51], s[0:1], {KA_WG}")
    a(f"s_load_dwordx2 s[46:47], s[0:1], {KA_WS}")
    a(f"s_load_dwordx2 s[6:7], s[0:1], {KA_WD}")
    a(f"v_and_b32 v{V_LANE}, 63, v0")
    a("v_lshrrev_b32 v16, 6, v0")
    a(f"v_lshlrev_b32 v{V_L16R}, 4, v{V_LANE}")
    a(f"v_readfirstlane_b32 s{S_W}, v16")
    a(f"s_and_b32 s{S_TMP}, s2, 7")
    a(f"s_lshr_b32 s{S_TMP2}, s2, 3")
    a(f"s_and_b32 s{S_G}, s{S_TMP2}, 3")
    a(f"s_lshl_b32 s{S_TMP}, s{S_TMP}, 2")
    a(f"s_add_u32 s{S_G}, s{S_G}, s{S_TMP}")
    a(f"s_lshr_b32 s{S_MT}, s{S_TMP2}, 2")
    a(f"s_add_u32 s{S_TMP}, s{S_G}, 22")
    a(f"s_lshr_b32 s{S_TMP}, s{S_TMP}, 1")
    a(f"s_cmp_lt_u32 s{S_G}, 22")
    a(f"s_cselect_b32 s{S_T0}, s{S_G}, s{S_TMP}")
    a(f"s_lshl_b32 s{S_TB}, s{S_MT}, 4")
    a(f"s_lshl_b32 s{S_TMP}, s{S_W}, 2")
    a(f"s_add_u32 s{S_TB}, s{S_TB}, s{S_TMP}")
    a(f"s_mul_i32 s{S_XOFF}, s{S_TB}, {18*1024}")
    a(f"s_add_u32 s{S_XOFF}, s{S_XOFF}, {WS_XF}")
    a(f"v_lshrrev_b32 v16, 2, v{V_LANE}")
    a(f"v_and_b32 v17, 3, v{V_LANE}")
    a("v_lshrrev_b32 v18, 3, v16")
    a("v_lshlrev_b32 v18, 1, v18")
    a("v_xor_b32 v17, v17, v18")
    a("v_lshlrev_b32 v17, 4, v17")
    a(f"v_mul_u32_u24 v{V_DF}, 9216, v16")
    a(f"v_add_u32 v{V_DF}, v{V_DF}, v17")
    a(f"v_lshrrev_b32 v16, 3, v{V_LANE}")
    a(f"v_and_b32 v17, 7, v{V_LANE}")
    a("v_bfe_u32 v18, v16, 1, 1")
    a("v_lshlrev_b32 v18, 1, v18")
    a("v_xor_b32 v17, v17, v18")
    a("v_mul_u32_u24 v16, 3456, v16")
    a(f"s_and_b32 s{S_TMP}, s{S_W}, 1")
    a(f"s_lshl_b32 s{S_TMP}, s{S_TMP}, 2")
    a(f"v_xor_b32 v18, s{S_TMP}, v17")
    a(f"v_lshl_add_u32 v{V_DQA}, v18, 4, v16")
    a("v_xor_b32 v18, 4, v18")
    a(f"v_lshl_add_u32 v{V_DQB}, v18, 4, v16")
    a(f"v_and_b32 v16, 15, v{V_LANE}")
    a("v_lshrrev_b32 v17, 2, v16")
    a("v_and_b32 v16, 3, v16")
    a("v_lshlrev_b32 v16, 3, v16")
    a(f"v_lshrrev_b32 v18, 4, v{V_LANE}")
    a("v_lshl_add_u32 v19, v18, 3, v17")
    a("v_lshl_add_u32 v20, v19, 6, v16")
    a("v_and_b32 v21, 1, v18")
    a(f"v_lshl_add_u32 v{V_TF0}, v21, 5, v20")
    a("v_xor_b32 v21, 1, v21")
    a(f"v_lshl_add_u32 v{V_TF1}, v21, 5, v20")
    a("v_lshl_add_u32 v20, v19, 7, v16")
    a("v_bfe_u32 v21, v17, 1, 1")
    a("v_and_b32 v22, 1, v18")
    a("v_lshl_or_b32 v21, v22, 1, v21")
    for z in range(4):
        a(f"v_xor_b32 v22, {z}, v21")
        a(f"v_lshl_add_u32 v{V_TQ+z}, v22, 5, v20")
    a(f"v_and_b32 v16, 15, v{V_LANE}")
    a("v_and_b32 v17, 1, v18")
    a("v_lshl_add_u32 v16, v17, 5, v16")
    a("v_lshlrev_b32 v16, 4, v16")
    a("v_lshrrev_b32 v17, 1, v18")
    a(f"v_lshl_add_u32 v{V_HP}, v17, 3, v16")
    a("s_waitcnt lgkmcnt(0)")
    srd(a, S_WQ, 4, 576*1728*2)
    a(f"s_cmp_lt_u32 s{S_W}, 2")
    a("s_cselect_b32 s4, s48, s50")
    a("s_cselect_b32 s5, s49, s51")
    srd(a, S_WF, 4, 576*4608*2)
    srd(a, S_WS, 46, WS_END)
    a(f"s_and_b32 s{S_TMP}, s{S_W}, 1")
    a(f"s_mul_i32 s{S_FROW}, s{S_TMP}, {48*9216}")
    a(f"s_mul_i32 s{S_FLDS}, s{S_TMP}, 3072")
    a(f"s_lshr_b32 s{S_TMP}, s{S_W}, 1")
    a(f"s_mul_i32 s{S_TMP}, s{S_TMP}, 6144")
    a(f"s_add_u32 s{S_FLDS}, s{S_FLDS}, s{S_TMP}")
    a(f"s_mul_i32 s{S_QROW}, s{S_W}, {24*3456}")
    a(f"s_lshl_b32 s{S_TMP}, s{S_T0}, 7")
    a(f"s_add_u32 s{S_QROW}, s{S_QROW}, s{S_TMP}")
    a(f"s_mul_i32 s{S_QLDS}, s{S_W}, {24*128}")
    a(f"s_mul_i32 s{S_COL}, s{S_G}, 288")
    a(f"s_and_b32 s{S_TMP}, s{S_G}, 1")
    a(f"s_lshl_b32 s{S_TMP2}, s{S_TMP}, 5")
    a(f"s_add_u32 s{S_COL}, s{S_COL}, s{S_TMP2}")
    a(f"v_add_u32 v{V_DF}, s{S_COL}, v{V_DF}")
    a(f"v_add_u32 v{V_DF2}, 64, v{V_DF}")
    a(f"s_cmp_eq_u32 s{S_TMP}, 0")
    a(f"s_mov_b32 s{S_D4}, -192")
    a(f"s_cselect_b32 s{S_D4}, 128, s{S_D4}")
    for j in range(6):
        for i in range(3):
            a(f"s_add_u32 s{S_TAB + 3*j + i}, s{S_FROW}, {(96*j + 16*i) * 9216 - 1024*i}")
    vm = VM()
    def issue_stage(j):
        groups = []
        for g in dma_qkv_stage(j): groups.append((g, ("w", j)))
        for g in dma_ffn_stage(j, REG, 0): groups.append((g, ("w", j)))
        for g in xload_stage(j): groups.append((g, ("x", j)))
        return groups
    hasld = lambda g: any(x.startswith("buffer_") for x in g)
    for j in range(NPRE):
        for g, tag in issue_stage(j):
            a.extend(g)
            if hasld(g): vm.issue(tag)
    a(f"s_lshr_b32 s{S_HOFF}, s{S_TB}, 1")
    a(f"s_mul_i32 s{S_HOFF}, s{S_HOFF}, 288")
    a(f"s_mul_i32 s{S_TMP}, s{S_G}, 9")
    a(f"s_add_u32 s{S_HOFF}, s{S_HOFF}, s{S_TMP}")
    a(f"s_lshl_b32 s{S_HOFF}, s{S_HOFF}, 10")
    a(f"s_add_u32 s{S_HOFF}, s{S_HOFF}, {WS_HF}")
    a(f"s_and_b32 s{S_TMP}, s{S_G}, 1")
    a(f"s_cmp_eq_u32 s{S_TMP}, 0")
    a(f"s_cselect_b32 s{S_TMP2}, {8*1024}, 0")
    a(f"s_add_u32 s{S_HLAST}, s{S_HOFF}, s{S_TMP2}")
    a(f"s_lshl_b32 s{S_TMP}, s{S_TMP}, 10")
    a(f"s_add_u32 s{S_HOFF}, s{S_HOFF}, s{S_TMP}")
    a(f"v_add_u32 v{V_CUR}, {REG}, v{V_TF0}")
    a(f"v_add_u32 v{V_NXT}, {REG}, v{V_TF1}")
    stamp_at(a, 1)
    a(vm.wait(("x", 0)))
    a("s_barrier")
    stamp_at(a, 2)

    def pass1(kind):
        vmx = VM(); vmx.n = vm.n; vmx.tags = dict(vm.tags)
        seq = []
        for s in range(18):
            for e in range(8): seq.append((s, e))
        def rd(fi):
            s, e = seq[fi]
            if e < 4: return rd_qkv(fi, e, s)
            return rd_ffn(fi, V_CUR if e < 6 else V_NXT, e % 2, s)
        mf = []; fixed = {}
        for fi, (s, e) in enumerate(seq):
            aset = ACC[e // 2]; a_ = e % 2
            k = kind if e < 4 else "n"
            for T in range(4): mf.append(mfma(k, aset, a_, T, s, fi))
        PF = 4
        pre = []
        for fi in range(PF): pre += rd(fi)
        out = list(pre) + ["s_waitcnt lgkmcnt(4)"]
        nper = 24 * 4
        for j in range(6):
            m = mf[j*nper:(j+1)*nper]
            fx = {}
            for fl in range(24):
                fi = j*24 + fl
                g0 = 4*fl
                pf = fi + PF
                if pf < len(seq):
                    if pf % 24 == 0:
                        fx.setdefault(g0, []).append("@WAIT" + str(j+1))
                        fx.setdefault(g0, []).append("s_barrier")
                    if pf == 72:
                        for reg in (V_TQ, V_TQ+1, V_TQ+2, V_TQ+3, V_CUR, V_NXT):
                            fx.setdefault(g0, []).append(f"v_add_u32 v{reg}, {3*STG}, v{reg}")
                    r = rd(pf)
                    fx.setdefault(g0, []).append(r[0]); fx.setdefault(g0+1, []).append(r[1])
                if fi % 2 == 1 and fi + 1 < len(seq):
                    allow = 2 * (min(pf, len(seq)-1) - (fi + 2))
                    fx.setdefault(g0+3, []).append(f"s_waitcnt lgkmcnt({max(allow,0)})")
            q = []; tags = []
            if j >= 2:
                for g in dma_ffn_stage(j - 2, 0, 1):
                    q.append(g)
                    if hasld(g): tags.append(("p1", j-2))
            nxts = [j + NPRE] if j + NPRE < 6 else []
            pre_q = []
            for jj in nxts:
                for g, tag in issue_stage(jj):
                    pre_q.append((g, tag))
            q2 = [g for g, t in pre_q] + q
            tags = [t for g, t in pre_q if hasld(g)] + tags
            q = q2
            st = schedule(m, fx, q, lo=0, hi=80)
            gi = 0
            res = []
            for ins in st:
                if ins.startswith("@WAIT"):
                    res.append(vmx.wait(("x", int(ins[5:])))); continue
                res.append(ins)
                if ins.startswith("buffer_load"):
                    vmx.issue(tags[gi]); gi += 1
            assert gi == len(tags)
            out += res
        return out, vmx

    fl = lambda L: [x for g in L for x in g]
    def dm(region, pair):
        o = [g for j in range(6) for g in dma_ffn_stage(j, region, pair)]
        if pair == 2: o = [[f"v_add_u32 v{V_DF}, 128, v{V_DF}"]] + o
        if pair == 3: o = [[f"v_add_u32 v{V_DF2}, 128, v{V_DF2}"]] + o
        if pair == 4: o = [[f"v_add_u32 v{V_DF}, s{S_D4}, v{V_DF}"]] + o
        return o
    SETS = {0: ACC[2], 1: ACC[3], 2: ACC[4], 3: ACC[0], 4: ACC[1], 5: ACC[2], 6: ACC[3], 7: ACC[4], 8: ACC[0]}
    class EQ:
        def __init__(s): s.items = [(k, x) for k in range(9) for x in epi_ffn(SETS[k], k == 8)]; s.pos = 0
        def take(s, unit, budget):
            out = []; c = 0
            must = [k for k in range(unit) if unit + 1 <= 8 and SETS[k] == SETS[unit + 1]]
            lastmust = max([i for i, (k, x) in enumerate(s.items) if k in must], default=-1)
            while s.pos < len(s.items):
                k, x = s.items[s.pos]
                if k >= unit: break
                if c >= budget and s.pos > lastmust: break
                out.append(x); c += cost(x); s.pos += 1
            return out
        def rest(s):
            o = [x for k, x in s.items[s.pos:]]; s.pos = len(s.items); return o
    def merge(dmas, epi):
        if not dmas: return epi
        out = []; n = len(epi); m = len(dmas); gi = 0
        for i, x in enumerate(epi):
            while gi < m and gi * max(n, 1) <= i * m * 1.25: out += dmas[gi]; gi += 1
            out.append(x)
        while gi < m: out += dmas[gi]; gi += 1
        return out
    BUD = EPI_BUDGET
    def resolve(lines):
        out = []; cnt = {}
        for ins in lines:
            if ins.startswith("@VM:"):
                tag = ins[4:]
                out.append(f"s_waitcnt vmcnt({min(cnt[tag], 63)})"); continue
            if ins.startswith("buffer_"):
                for t in cnt: cnt[t] += 1
                if "; tag=" in ins: cnt[ins.split("; tag=")[1]] = 0
            out.append(ins)
        return out
    bar = lambda tag: [f"@VM:{tag}", "s_waitcnt lgkmcnt(0)", "s_barrier"]

    a(f"s_cmp_ge_u32 s{S_T0}, 18")
    a("s_cbranch_scc1 k1_vpath")
    eq_state = None
    for kind in ("n", "v"):
        if kind == "v": a.label("k1_vpath")
        if kind == "n":
            a(f"s_mov_b32 s{S_SCALE}, {float_hex(QSCALE2)}")
            a(f"s_cmp_lt_u32 s{S_T0}, 9")
            a(f"s_cselect_b32 s{S_SCALE}, s{S_SCALE}, 1.0")
            a(f"s_lshl_b32 s{S_QKOFF}, s{S_T0}, 18")
            a(f"s_lshl_b32 s{S_TMP}, s{S_TB}, 6")
            a(f"s_add_u32 s{S_QKOFF}, s{S_QKOFF}, s{S_TMP}")
            a(f"s_add_u32 s{S_QKOFF}, s{S_QKOFF}, {WS_QKP}")
            a(f"v_lshrrev_b32 v16, 4, v{V_LANE}")
            a(f"v_and_b32 v17, 15, v{V_LANE}")
            a("v_lshlrev_b32 v17, 2, v17")
            a(f"v_lshl_add_u32 v{V_QP}, v16, 14, v17")
            e0, e1 = epi_qk(ACC[0]), epi_qk(ACC[1])
        else:
            a(f"s_mul_i32 s{S_QKOFF}, s{S_TB}, 576")
            a(f"s_add_u32 s{S_QKOFF}, s{S_QKOFF}, {WS_VF}")
            def vpat(q, a_, dst):
                o = []
                o.append(f"s_lshl_b32 s{S_TMP2}, s{S_T0}, 6")
                o.append(f"s_sub_u32 s{S_TMP2}, s{S_TMP2}, {1152 - 32*q - 16*a_}")
                o.append(f"v_and_b32 v{dst}, 15, v{V_LANE}")
                o.append(f"v_add_u32 v{dst}, s{S_TMP2}, v{dst}")
                o.append(f"v_mul_u32_u24 v{TMP+22}, 3641, v{dst}")
                o.append(f"v_lshrrev_b32 v{TMP+22}, 16, v{TMP+22}")
                o.append(f"v_mul_u32_u24 v{TMP+23}, 18, v{TMP+22}")
                o.append(f"v_sub_u32 v{dst}, v{dst}, v{TMP+23}")
                o.append(f"v_lshlrev_b32 v{dst}, 4, v{dst}")
                o.append(f"v_mul_u32_u24 v{TMP+22}, {128*576}, v{TMP+22}")
                o.append(f"v_add_u32 v{dst}, v{dst}, v{TMP+22}")
                o.append(f"v_bfe_u32 v{TMP+22}, v{V_LANE}, 4, 1")
                o.append(f"v_mul_u32_u24 v{TMP+22}, 288, v{TMP+22}")
                o.append(f"v_add_u32 v{dst}, v{dst}, v{TMP+22}")
                o.append(f"v_lshrrev_b32 v{TMP+22}, 5, v{V_LANE}")
                o.append(f"v_lshl_add_u32 v{dst}, v{TMP+22}, 3, v{dst}")
                return o
            e0 = vpat(0, 0, TMP+16) + vpat(0, 1, TMP+17) + epi_v(ACC[0], (TMP+16, TMP+17))
            e1 = vpat(1, 0, TMP+16) + vpat(1, 1, TMP+17) + epi_v(ACC[1], (TMP+16, TMP+17))
        RI[0] = 0
        st, vmx = pass1(kind)
        L = list(st)
        L += [vmx.wait(("p1", 3)), "s_waitcnt lgkmcnt(0)", "s_barrier"]
        if STAMP: L.append(f"s_memtime s[{STB+6}:{STB+7}]")
        L += fl([g for j in (4, 5) for g in dma_ffn_stage(j, 0, 1)])
        L += [f"v_mov_b32 v{V_CUR}, v{V_TF0}", f"v_mov_b32 v{V_NXT}, v{V_TF1}"]
        RI[0] = 144
        for fi in range(4): L += rd_ffn(RI[0] + fi, V_CUR, fi % 2, fi // 2)
        L.append("s_waitcnt lgkmcnt(4)")
        eq = EQ()
        d2 = dm(REG, 2)
        st = unit_ffn(ACC[4], merge(d2[:11], list(e0) + list(e1)), nxt=True, lo=2, hi=140)
        res = []; done = False; bumped = False
        for ins in st:
            if ins.startswith(f"v_add_u32 v{V_CUR}, {3*STG}"): bumped = True
            if bumped and not done and ins.startswith("ds_read_b64_tr_b16") and ins.endswith(f"offset:{STG}"):
                res += ["@VM:p1b5", "s_barrier"]; done = True
            res.append(ins)
        assert done
        L += res
        L += [f"v_mov_b32 v{V_CUR}, v{V_NXT}", f"v_add_u32 v{V_NXT}, {REG}, v{V_TF0}"]
        L += unit_ffn(ACC[0], merge(d2[11:], eq.take(3, BUD)), nxt=True, barrier=bar("p2b5"), lo=2, hi=124)
        a.extend(resolve(L))
        a("s_branch k1_ffn")
        if eq_state is None: eq_state = eq.pos
        assert eq_state == eq.pos
    a.label("k1_ffn")
    stamp_at(a, 4)
    L = []
    d3 = dm(0, 3); d4 = dm(REG, 4)
    L += [f"v_mov_b32 v{V_CUR}, v{V_NXT}", f"v_add_u32 v{V_NXT}, {REG}, v{V_TF1}"]
    L += unit_ffn(ACC[1], merge(d3[:15], eq.take(4, BUD)), nxt=True, lo=2, hi=140)
    L += [f"v_mov_b32 v{V_CUR}, v{V_NXT}", f"v_mov_b32 v{V_NXT}, v{V_TF0}"]
    L += unit_ffn(ACC[2], merge(d3[15:], eq.take(5, BUD)), nxt=True, barrier=bar("p3b5"), lo=2, hi=124)
    if STAMP: L.append(f"s_memtime s[{STB+10}:{STB+11}]")
    L += [f"v_mov_b32 v{V_CUR}, v{V_NXT}", f"v_mov_b32 v{V_NXT}, v{V_TF1}"]
    pf = []
    if PREFETCH_WD:
        P0, P1 = V_TQ, V_TQ + 1
        pf += [f"s_mov_b32 s{S_WQ}, s6", f"s_and_b32 s{S_WQ+1}, s7, 0xffff", f"s_mov_b32 s{S_WQ+2}, {4608*576*2}",
               f"s_and_b32 s{S_TMP}, s2, 7", f"s_lshr_b32 s{S_TMP2}, s{S_TMP}, 1", f"s_mul_i32 s{S_TMP2}, s{S_TMP2}, 1152",
               f"s_lshr_b32 s{S_TMP3}, s2, 3", f"s_mul_i32 s{S_TMP3}, s{S_TMP3}, 36", f"s_add_u32 s{S_TMP2}, s{S_TMP2}, s{S_TMP3}",
               f"s_mul_i32 s{S_TMP2}, s{S_TMP2}, 1152", f"s_and_b32 s{S_TMP}, s{S_TMP}, 1", f"s_mul_i32 s{S_TMP}, s{S_TMP}, 576",
               f"s_add_u32 s{S_XOFF}, s{S_TMP2}, s{S_TMP}"]
        pf += [f"s_mul_i32 s{S_TMP}, s{S_W}, 81"]
        for r in range(2):
            pf += [f"v_add_u32 v{P0}, {64*r}, v{V_LANE}"]
            if r == 1: pf += [f"v_min_u32 v{P0}, 80, v{P0}"]
            pf += [f"v_add_u32 v{P0}, s{S_TMP}, v{P0}", f"v_mul_u32_u24 v{P1}, 7282, v{P0}", f"v_lshrrev_b32 v{P1}, 16, v{P1}",
                   f"v_mul_u32_u24 v{P0+2}, 9, v{P1}", f"v_sub_u32 v{P0}, v{P0}, v{P0+2}", f"v_mul_u32_u24 v{P1}, 1152, v{P1}",
                   f"v_lshl_add_u32 v{P0}, v{P0}, 6, v{P1}", f"buffer_load_dword v{P0+3}, v{P0}, s[{S_WQ}:{S_WQ+3}], s{S_XOFF} offen"]
    L += unit_ffn(ACC[3], merge(d4[:15], eq.take(6, BUD)), nxt=True, lo=2, hi=140)
    L += [f"s_and_b32 s{S_TMP}, s{S_G}, 1", f"s_cmp_eq_u32 s{S_TMP}, 1", "s_cselect_b64 vcc, -1, 0", f"v_mov_b32 v{V_CUR}, v{V_NXT}", "s_nop 1",
          f"v_cndmask_b32 v{V_TF8}, v{V_TF0}, v{V_TF1}, vcc", f"v_add_u32 v{V_NXT}, {REG}, v{V_TF8}"]
    L += unit_ffn(ACC[4], merge(d4[15:], eq.take(7, BUD)), nxt=True, barrier=bar("p4b5"), lo=2, hi=124)
    if STAMP: L.append(f"s_memtime s[{STB+12}:{STB+13}]")
    L += [f"v_mov_b32 v{V_CUR}, v{V_NXT}"]
    L += unit_ffn(ACC[0], pf + eq.take(8, BUD), nxt=None, lo=2, hi=140)
    if STAMP: L.append(f"s_memtime s[{STB+14}:{STB+15}]")
    L += ["s_nop 7"] + eq.rest()
    a.extend(resolve(L))
    a("s_waitcnt vmcnt(0)")
    stamp_at(a, 8)
    stamp_out(a, 9)
    a("s_waitcnt vmcnt(0)")
    rt_end(a, 1, 46, S_W)
    a.label("k1_end")
    a("s_endpgm")
    fix_m0(a)
    return a.text() + kernel_desc(name, 512, 256, 100), name
```

```python
from common import *
from k0 import float_hex

WST = 36864
NWST = 3
KV0 = WST * NWST
KVST = 12800
NKV = 4
KV_K, KV_X, KV_V = 0, 4096, 4608
K2_LDS = KV0 + NKV * KVST
CMARGIN = 90.0
INVC = 1.0 / 1.4426950408889634
STAMP = False
EXP = set()

S_WS, S_WD = 8, 12
S_W, S_XCD, S_SLOT = 16, 17, 18
S_T, S_T2, S_T3 = 19, 20, 21
S_W0 = 22

def stamp_at(a, i):
    if STAMP: a(f"s_memtime s[{64+2*i}:{65+2*i}]")
def stamp_out(a, n, wsptr):
    if not STAMP: return
    a("s_waitcnt lgkmcnt(0)")
    a("s_lshl_b32 s4, s2, 3")
    a(f"s_add_u32 s4, s4, s{S_W0}")
    a("s_lshl_b32 s4, s4, 6")
    a(f"s_add_u32 s4, s4, {WS_END + 0x20000}")
    a("v_mov_b32 v12, s4")
    for i in range(n):
        a(f"v_mov_b32 v13, s{64+2*i}")
        a(f"global_store_dword v12, v13, s[{wsptr}:{wsptr+1}] offset:{4*i}")
    a("s_waitcnt vmcnt(0)")

A_Q1 = [16, 20]
A_Q2A = [24, 26]
A_Q2B = [28, 30]
A_K1 = [32, 36]
A_KX = [40, 44]
A_V = [48, 56]
A_S = [64, 80]
A_P = [96, 104]
A_O = [112, 128]
A_NM = [144, 160]
A_TMP = 176
A_RL16, A_RX16, A_L16, A_L4 = 4, 5, 9, 10
SA_H, SA_TBQ, SA_CNT = 24, 25, 27

def qk_mfmas(sbuf, kbuf, kxbuf, kt, b, cinit):
    S = vr(A_S[sbuf], 16)
    kx = vr(A_KX[kxbuf] + 2 * (kt // 2), 2)
    q2 = vr((A_Q2A if kt % 2 == 0 else A_Q2B)[b], 2)
    return [f"v_mfma_f32_32x32x8_bf16 {S}, {kx}, {q2}, {cinit}",
            f"v_mfma_f32_32x32x16_bf16 {S}, {vr(A_K1[kbuf],4)}, {vr(A_Q1[b],4)}, {S}"]
def pv_mfmas(pbuf, vbuf, b):
    O = vr(A_O[b], 16)
    return [f"v_mfma_f32_32x32x16_bf16 {O}, {vr(A_V[vbuf],4)}, {vr(A_P[pbuf],4)}, {O}",
            f"v_mfma_f32_32x32x16_bf16 {O}, {vr(A_V[vbuf]+4,4)}, {vr(A_P[pbuf]+4,4)}, {O}"]
def k1_read(kbuf, slot, kt): return [f"ds_read_b128 {vr(A_K1[kbuf],4)}, v{A_RL16} offset:{slot*KVST + KV_K + kt*1024}"]
def kx_read(kxbuf, slot): return [f"ds_read_b128 {vr(A_KX[kxbuf],4)}, v{A_RX16} offset:{slot*KVST}"]
def v_reads(vbuf, slot, kt):
    return [f"ds_read_b128 {vr(A_V[vbuf],4)}, v{A_RL16} offset:{slot*KVST + KV_V + 2*kt*1024}",
            f"ds_read_b128 {vr(A_V[vbuf]+4,4)}, v{A_RL16} offset:{slot*KVST + KV_V + (2*kt+1)*1024}"]

def attn_step(c, kt, b, do_qk, do_pv, pre):
    j = 2 * kt + b
    sb, nb = j % 2, (j + 1) % 2
    S, P = A_S[sb], A_P[sb]
    nkt = kt if b == 0 else kt + 1
    nc = c + (1 if nkt == 4 else 0)
    nkt %= 4
    nbq = 1 - b
    qk = qk_mfmas(nb, nkt % 2, nc % 2, nkt, nbq, vr(A_NM[nbq], 16)) if do_qk else []
    pkt = kt if b == 1 else kt - 1
    pv = pv_mfmas(nb, pkt % 2, nbq) if do_pv else []
    order = []
    if qk: order.append(qk[0])
    if pv: order.append(pv[0])
    if qk: order.append(qk[1])
    if pv: order.append(pv[1])
    ex = [f"v_exp_f32 v{S+k}, v{S+k}" for k in range(16)]
    cv = [f"v_cvt_pk_bf16_f32 v{P+k}, v{S+2*k}, v{S+2*k+1}" for k in range(8)]
    out = []
    waits = [x for x in pre if x.startswith("s_waitcnt") or x == "s_barrier"]
    reads = [x for x in pre if x not in waits]
    out += waits
    for g in range(4):
        if g < len(order): out.append(order[g])
        if g == 0: out += reads
        out += ex[4*g:4*g+4]
        if g >= 1: out += cv[2*(g-1):2*(g-1)+2]
    out += cv[6:8]
    return out

def gen_attn(a):
    a(f"s_lshl_b32 s{SA_H}, s{S_XCD}, 2")
    a(f"s_and_b32 s{S_T}, s{S_SLOT}, 3")
    a(f"s_add_u32 s{SA_H}, s{SA_H}, s{S_T}")
    a(f"s_lshr_b32 s{S_T}, s{S_SLOT}, 2")
    a(f"s_lshl_b32 s{SA_TBQ}, s{S_T}, 3")
    a(f"s_lshl_b32 s{S_T}, s{S_W}, 1")
    a(f"s_add_u32 s{SA_TBQ}, s{SA_TBQ}, s{S_T}")
    a("v_and_b32 v2, 31, v1")
    a(f"v_lshlrev_b32 v{A_L4}, 2, v2")
    a("v_lshrrev_b32 v3, 5, v1")
    a(f"v_lshl_add_u32 v11, v3, 15, v{A_L4}")
    a(f"s_mul_i32 s{S_T}, s{SA_H}, {9*8192}")
    a(f"s_add_u32 s{S_T}, s{S_T}, {WS_QKP}")
    KT = A_TMP + 8
    a(f"s_add_u32 s{S_T3}, s{S_T}, {288*8192}")
    for kt in range(4):
        for j in range(4):
            a(f"s_add_u32 s{S_T2}, s{S_T3}, {j*8192 + kt*128}")
            a(f"buffer_load_dword v{KT+4*kt+j}, v11, s[{S_WS}:{S_WS+3}], s{S_T2} offen")
        a(f"s_add_u32 s{S_T2}, s{S_T3}, {8*8192 + kt*128}")
        a(f"buffer_load_dword v{A_KX[0]+kt}, v{A_L4}, s[{S_WS}:{S_WS+3}], s{S_T2} offen")
    a(f"s_lshl_b32 s{S_T2}, s{SA_TBQ}, 7")
    a(f"s_add_u32 s{S_T}, s{S_T}, s{S_T2}")
    for b in range(2):
        for j in range(4):
            a(f"s_add_u32 s{S_T2}, s{S_T}, {j*8192 + b*128}")
            a(f"buffer_load_dword v{A_Q1[b]+j}, v11, s[{S_WS}:{S_WS+3}], s{S_T2} offen")
        a(f"s_add_u32 s{S_T2}, s{S_T}, {8*8192 + b*128}")
        a(f"buffer_load_dword v{A_Q2A[b]}, v{A_L4}, s[{S_WS}:{S_WS+3}], s{S_T2} offen")
    a("s_setprio 2")
    a(f"v_lshlrev_b32 v{A_L16}, 4, v1")
    X = A_TMP
    a(f"v_mov_b32 v{X+1}, 0x3f803f80")
    a(f"v_cmp_eq_u32 vcc, 18, v2")
    a("s_nop 1")
    a(f"v_cndmask_b32 v{X+4}, 0, v{X+1}, vcc")
    a(f"v_mov_b32 v{X+5}, v{X+4}")
    a(f"v_mov_b32 v{X+6}, v{X+4}")
    a(f"v_mov_b32 v{X+7}, v{X+4}")
    a(f"s_mul_i32 s{S_T2}, s{S_W}, {KVST}")
    a(f"s_add_u32 s{S_T2}, s{S_T2}, {KV0 + KV_V}")
    a(f"v_add_u32 v{X+2}, s{S_T2}, v{A_L16}")
    a(f"v_cmp_le_u32 vcc, 18, v2")
    a("s_and_saveexec_b64 s[28:29], vcc")
    for i in range(8):
        a(f"ds_write_b128 v{X+2}, {vr(X+4,4)} offset:{i*1024}")
    a("s_mov_b64 exec, s[28:29]")
    for b in range(2):
        for k in range(16): a(f"v_mov_b32 v{A_O[b]+k}, 0")
    a(f"v_add_u32 v{A_RL16}, {KV0}, v{A_L16}")
    a(f"v_lshlrev_b32 v{A_RX16}, 4, v2")
    a(f"v_add_u32 v{A_RX16}, {KV0 + KV_X}, v{A_RX16}")
    a("v_cmp_gt_u32 vcc, 32, v1")
    a("s_waitcnt vmcnt(0)")
    for b in range(2):
        a(f"v_cndmask_b32 v{A_Q2A[b]}, 0, v{A_Q2A[b]}, vcc")
        a(f"v_mov_b32 v{A_Q2A[b]+1}, 0")
        a(f"v_mov_b32 v{A_Q2B[b]}, 0")
        a(f"v_mov_b32 v{A_Q2B[b]+1}, v{A_Q2A[b]}")
    stamp_at(a, 1)
    M = [A_TMP, A_TMP + 1]
    a(f"v_mov_b32 v{M[0]}, 0xff800000")
    a(f"v_mov_b32 v{M[1]}, 0xff800000")
    def pre_qk(kt, b):
        S = vr(A_S[b], 16)
        kx = vr(A_KX[0] + 2 * (kt // 2), 2)
        q2 = vr((A_Q2A if kt % 2 == 0 else A_Q2B)[b], 2)
        return [f"v_mfma_f32_32x32x8_bf16 {S}, {kx}, {q2}, 0", f"v_mfma_f32_32x32x16_bf16 {S}, {vr(KT+4*kt,4)}, {vr(A_Q1[b],4)}, {S}"]
    seq = [(kt, b) for kt in range(4) for b in range(2)]
    a.extend(pre_qk(0, 0)); a.extend(pre_qk(0, 1))
    a("s_nop 7")
    for idx, (kt, b) in enumerate(seq):
        S = A_S[b]
        if idx == 0: a("s_nop 3")
        for k in range(8):
            a(f"v_max3_f32 v{M[b]}, v{S+2*k}, v{S+2*k+1}, v{M[b]}")
        if idx + 2 < len(seq):
            a.extend(pre_qk(*seq[idx + 2]))
            a("s_nop 1")
    for b in range(2):
        a(f"v_mov_b32 v{A_TMP+2}, v{M[b]}")
        a("s_nop 1")
        a(f"v_permlane32_swap_b32 v{A_TMP+2}, v{M[b]}")
        a("s_nop 1")
        a(f"v_max_f32 v{M[b]}, v{M[b]}, v{A_TMP+2}")
        a(f"v_add_f32 v{M[b]}, {float_hex(CMARGIN)}, v{M[b]}")
        for k in range(16):
            a(f"v_sub_f32 v{A_NM[b]+k}, 0, v{M[b]}")
    a("s_waitcnt lgkmcnt(0)")
    stamp_at(a, 2)
    a("s_barrier")
    stamp_at(a, 3)
    a.extend(k1_read(0, 0, 0)); a.extend(kx_read(0, 0))
    a("s_waitcnt lgkmcnt(0)")
    a.extend(qk_mfmas(0, 0, 0, 0, 0, vr(A_NM[0], 16)))
    a("s_nop 7")
    def chunk(c, first, last):
        slot = c % NKV
        for kt in range(4):
            for b in range(2):
                j = 2*kt + b
                pre = []
                if b == 0:
                    pre = v_reads(kt % 2, slot, kt)
                    if kt < 3: pre += k1_read((kt+1) % 2, slot, kt+1)
                    elif not last: pre += k1_read(0, (c+1) % NKV, 0) + kx_read((c+1) % 2, (c+1) % NKV)
                    if kt == 1: pre = ["s_barrier"] + pre
                else:
                    pre = ["s_waitcnt lgkmcnt(0)"]
                do_qk = not (last and j == 7)
                do_pv = not (first and j == 0)
                st = attn_step(c, kt, b, do_qk, do_pv, pre)
                if 'noa' in EXP: st = [x for x in st if x == "s_barrier"]
                a.extend(st)
    for c in range(4): chunk(c, c == 0, False)
    a(f"s_mov_b32 s{SA_CNT}, 0")
    a.label("k2_aloop")
    for c in range(4, 8): chunk(c, False, False)
    a(f"s_add_u32 s{SA_CNT}, s{SA_CNT}, 1")
    a(f"s_cmp_lt_u32 s{SA_CNT}, 2")
    a("s_cbranch_scc1 k2_aloop")
    a(f"s_load_dwordx2 s[30:31], s[0:1], {KA_WO}")
    X = A_TMP
    a(f"s_mul_i32 s{S_T}, s{S_W}, 81")
    a(f"s_mul_i32 s{S_T2}, s{S_SLOT}, {18*1152}")
    a("s_waitcnt lgkmcnt(0)")
    a("s_mov_b32 s32, s30"); a("s_and_b32 s33, s31, 0xffff"); a(f"s_mov_b32 s34, {576*576*2}"); a("s_mov_b32 s35, 0x20000")
    for r in range(2):
        a(f"v_add_u32 v{X}, {64*r}, v1")
        if r == 1: a(f"v_min_u32 v{X}, 80, v{X}")
        a(f"v_add_u32 v{X}, s{S_T}, v{X}")
        a(f"v_mul_u32_u24 v{X+1}, 3641, v{X}")
        a(f"v_lshrrev_b32 v{X+1}, 16, v{X+1}")
        a(f"v_mul_u32_u24 v{X+2}, 18, v{X+1}")
        a(f"v_sub_u32 v{X}, v{X}, v{X+2}")
        a(f"v_mul_u32_u24 v{X+1}, 1152, v{X+1}")
        a(f"v_lshl_add_u32 v{X}, v{X}, 6, v{X+1}")
        a(f"buffer_load_dword v{X+3}, v{X}, s[32:35], s{S_T2} offen")
    for c in range(12, 16): chunk(c, False, c == 15)
    stamp_at(a, 4)
    a("s_nop 1")
    a.extend(pv_mfmas(1, 1, 1))
    a("s_barrier")
    a("s_nop 15")
    T = A_TMP
    for b in range(2):
        O = A_O[b]
        a(f"v_mov_b32 v{T}, v{O+10}")
        a(f"v_mov_b32 v{T+1}, v{O+10}")
        a("s_nop 1")
        a(f"v_permlane32_swap_b32 v{T+1}, v{T}")
        a("s_nop 1")
        a(f"v_rcp_f32 v{T+1}, v{T+1}")
        a("s_nop 0")
        a(f"v_mul_f32 v{T+1}, {float_hex(INVC)}, v{T+1}")
        for k in range(10):
            a(f"v_mul_f32 v{O+k}, v{O+k}, v{T+1}")
        for k in range(4):
            a(f"v_cvt_pk_bf16_f32 v{T+4+k}, v{O+2*k}, v{O+2*k+1}")
        a(f"v_cvt_pk_bf16_f32 v{T+8}, v{O+8}, v{O+9}")
        a(f"s_lshl_b32 s{S_T}, s{SA_H}, 6")
        a(f"s_add_u32 s{S_T}, s{S_T}, s{SA_TBQ}")
        a(f"s_lshl_b32 s{S_T}, s{S_T}, 10")
        a(f"s_add_u32 s{S_T}, s{S_T}, {WS_OF + b*1024}")
        a(f"buffer_store_dwordx4 {vr(T+4,4)}, v{A_L16}, s[{S_WS}:{S_WS+3}], s{S_T} offen")
        a(f"s_lshr_b32 s{S_T}, s{SA_H}, 3")
        a(f"s_lshl_b32 s{S_T}, s{S_T}, 6")
        a(f"s_add_u32 s{S_T}, s{S_T}, s{SA_TBQ}")
        a(f"s_lshl_b32 s{S_T}, s{S_T}, 10")
        a(f"s_bfe_u32 s{S_T2}, s{SA_H}, {(1<<16)|2}")
        a(f"s_lshl_b32 s{S_T2}, s{S_T2}, 9")
        a(f"s_add_u32 s{S_T}, s{S_T}, s{S_T2}")
        a(f"s_and_b32 s{S_T2}, s{SA_H}, 3")
        a(f"s_lshl_b32 s{S_T2}, s{S_T2}, 2")
        a(f"s_add_u32 s{S_T}, s{S_T}, s{S_T2}")
        a(f"s_add_u32 s{S_T}, s{S_T}, {WS_OX + b*1024}")
        a(f"v_mov_b32 v{T+9}, 0x7ffffff0")
        a("v_cmp_gt_u32 vcc, 32, v1")
        a("s_nop 1")
        a(f"v_cndmask_b32 v{T+9}, v{T+9}, v{A_L16}, vcc")
        a(f"buffer_store_dword v{T+8}, v{T+9}, s[{S_WS}:{S_WS+3}], s{S_T} offen")
        a("s_nop 1")
    a("s_waitcnt vmcnt(0)")
    stamp_at(a, 5)
    stamp_out(a, 6, 6)
    rt_end(a, 2, 6, S_W0)
    a("s_endpgm")

G_ACC = 64
G_RING = 208
G_H = 224
G_WP = 2
G_KP, G_VP, G_TR, G_TRC, G_L16, G_XP = 11, 12, 13, 14, 15, 16
SG_TBL, SG_KH, SG_S, SG_NH = 24, 25, 26, 27
SG_WOFF, SG_HOFF, SG_KOFF, SG_XOFF, SG_VOFF = 28, 29, 30, 31, 32
SG_WST, SG_KVS, SG_CUR, SG_CNT, SG_SO = 33, 34, 35, 36, 37
SG_VMASK = 38
SG_DV, SG_DX = 42, 43
SG_HEAD, SG_WLDS, SG_TB, SG_W1024, SG_WROT, SG_KVROT = 44, 45, 46, 47, 48, 49

def gen_gemm(a):
    a(f"s_sub_u32 s{S_W}, s{S_W}, 4")
    a(f"s_lshl_b32 s{S_T}, s{S_XCD}, 2")
    a(f"s_and_b32 s{S_T2}, s{S_SLOT}, 3")
    a(f"s_add_u32 s{SG_HEAD}, s{S_T}, s{S_T2}")
    a("v_and_b32 v17, 3, v1")
    a("v_lshrrev_b32 v18, 2, v1")
    a("v_lshlrev_b32 v18, 2, v18")
    a(f"v_lshl_add_u32 v{G_KP}, v17, 13, v18")
    a(f"v_lshl_add_u32 v{G_XP}, v17, 7, v18")
    a("v_and_b32 v17, 31, v1")
    a("v_lshrrev_b32 v18, 5, v1")
    a("v_mul_u32_u24 v18, 18, v18")
    a("v_add_u32 v18, v18, v17")
    a(f"v_lshlrev_b32 v{G_VP}, 4, v18")
    a("v_cmp_gt_u32 vcc, 18, v17")
    a(f"s_mul_i32 s{SG_KOFF}, s{SG_HEAD}, {9*8192}")
    a(f"s_add_u32 s{SG_KOFF}, s{SG_KOFF}, {WS_QKP + 288*8192}")
    a(f"s_and_b32 s{S_T}, s{S_W}, 1")
    a(f"s_lshl_b32 s{S_T2}, s{S_T}, 6")
    a(f"s_add_u32 s{SG_XOFF}, s{SG_KOFF}, s{S_T2}")
    a(f"s_add_u32 s{SG_XOFF}, s{SG_XOFF}, {8*8192}")
    a(f"s_lshl_b32 s{S_T2}, s{S_W}, 7")
    a(f"s_add_u32 s{SG_KOFF}, s{SG_KOFF}, s{S_T2}")
    a(f"s_mov_b64 s[{SG_VMASK}:{SG_VMASK+1}], vcc")
    a(f"s_lshl_b32 s{SG_VOFF}, s{SG_HEAD}, 7")
    a(f"s_lshl_b32 s{S_T2}, s{S_W}, 1")
    a(f"s_add_u32 s{SG_VOFF}, s{SG_VOFF}, s{S_T2}")
    a(f"s_mul_i32 s{SG_VOFF}, s{SG_VOFF}, 576")
    a(f"s_add_u32 s{SG_VOFF}, s{SG_VOFF}, {WS_VF}")
    a(f"s_lshl_b32 s{SG_W1024}, s{S_W}, 10")
    a(f"s_add_u32 s{SG_DV}, s{SG_W1024}, {KV_V}")
    a(f"s_lshl_b32 s{S_T}, s{S_T}, 8")
    a(f"s_add_u32 s{SG_DX}, s{S_T}, {KV_X}")
    a(f"s_sub_u32 s{SG_DX}, s{SG_DX}, s{SG_W1024}")
    a(f"s_mov_b32 s{SG_WROT}, 0"); a(f"s_mov_b32 s{SG_KVROT}, 0"); a(f"s_mov_b32 s{SG_CUR}, 0")
    def next_rot(sreg, step, n):
        return [f"s_add_u32 s{sreg}, s{sreg}, {step}", f"s_cmp_eq_u32 s{sreg}, {n*step}", f"s_cselect_b32 s{sreg}, 0, s{sreg}"]
    def issue_kv():
        out = [[f"s_add_u32 s{SG_KVS}, s{SG_KVROT}, s{SG_W1024}", f"s_add_u32 s{SG_KVS}, s{SG_KVS}, {KV0 + KV_K}"]]
        for g in range(4):
            h2, half = g // 2, g % 2
            out.append([f"s_add_u32 m0, s{SG_KVS}, {g*256}", f"s_add_u32 s{SG_SO}, s{SG_KOFF}, {h2*4*8192 + half*64}",
                        f"buffer_load_dword v{G_KP}, s[{S_WS}:{S_WS+3}], s{SG_SO} offen lds"])
        out.append([f"s_add_u32 m0, s{SG_KVS}, s{SG_DX}", "s_nop 0",
                    f"buffer_load_dword v{G_XP}, s[{S_WS}:{S_WS+3}], s{SG_XOFF} offen lds"])
        out.append([f"s_add_u32 m0, s{SG_KVS}, s{SG_DV}", f"s_mov_b64 exec, s[{SG_VMASK}:{SG_VMASK+1}]",
                    f"buffer_load_dwordx4 v{G_VP}, s[{S_WS}:{S_WS+3}], s{SG_VOFF} offen lds",
                    f"s_add_u32 m0, m0, 1024", f"s_add_u32 s{SG_SO}, s{SG_VOFF}, 576",
                    f"buffer_load_dwordx4 v{G_VP}, s[{S_WS}:{S_WS+3}], s{SG_SO} offen lds",
                    "s_mov_b64 exec, -1"])
        out.append([f"s_add_u32 s{SG_KOFF}, s{SG_KOFF}, 512", f"s_add_u32 s{SG_XOFF}, s{SG_XOFF}, 512",
                    f"s_add_u32 s{SG_VOFF}, s{SG_VOFF}, {8*576}"] + next_rot(SG_KVROT, KVST, NKV))
        return out
    flat = lambda L: [x for g in L for x in g]
    a.extend(flat(issue_kv()))
    a(f"s_and_b32 s{SG_TBL}, s{S_W}, 1")
    a(f"s_lshr_b32 s{SG_KH}, s{S_W}, 1")
    a(f"s_lshr_b32 s{SG_S}, s{S_XCD}, 1")
    a(f"s_and_b32 s{SG_NH}, s{S_XCD}, 1")
    a(f"v_lshlrev_b32 v{G_L16}, 4, v1")
    a(f"s_lshl_b32 s{SG_HOFF}, s{S_SLOT}, 1")
    a(f"s_add_u32 s{SG_HOFF}, s{SG_HOFF}, s{SG_TBL}")
    a(f"s_mov_b32 s{SG_TB}, s{SG_HOFF}")
    a(f"s_mul_i32 s{SG_HOFF}, s{SG_HOFF}, 288")
    a(f"s_mul_i32 s{S_T}, s{SG_S}, 72")
    a(f"s_add_u32 s{SG_HOFF}, s{SG_HOFF}, s{S_T}")
    a(f"s_mul_i32 s{S_T}, s{SG_KH}, 36")
    a(f"s_add_u32 s{SG_HOFF}, s{SG_HOFF}, s{S_T}")
    a(f"s_lshl_b32 s{SG_HOFF}, s{SG_HOFF}, 10")
    a(f"s_add_u32 s{SG_HOFF}, s{SG_HOFF}, {WS_HF}")
    def issue_h(slot):
        return [[f"buffer_load_dwordx4 {vr(G_H + 8*slot, 4)}, v{G_L16}, s[{S_WS}:{S_WS+3}], s{SG_HOFF} offen",
                 f"buffer_load_dwordx4 {vr(G_H + 8*slot + 4, 4)}, v{G_L16}, s[{S_WS}:{S_WS+3}], s{SG_HOFF} offen offset:1024",
                 f"s_add_u32 s{SG_HOFF}, s{SG_HOFF}, 2048"]]
    a.extend(flat(issue_h(0)))
    for i in range(9):
        a(f"v_add_u32 v17, {64*i}, v1")
        a("v_mul_u32_u24 v18, 1821, v17")
        a("v_lshrrev_b32 v18, 16, v18")
        a("v_mul_u32_u24 v19, 36, v18")
        a("v_sub_u32 v17, v17, v19")
        a("v_mul_u32_u24 v18, 1152, v18")
        a(f"v_lshl_add_u32 v{G_WP+i}, v17, 4, v18")
        if i % 4: a(f"v_subrev_u32 v{G_WP+i}, {(i%4)*1024}, v{G_WP+i}")
    a(f"s_mul_i32 s{SG_WOFF}, s{SG_S}, 1152")
    a(f"s_mul_i32 s{S_T}, s{SG_KH}, 576")
    a(f"s_add_u32 s{SG_WOFF}, s{SG_WOFF}, s{S_T}")
    a(f"s_lshl_b32 s{S_T}, s{SG_TBL}, 4")
    a(f"s_add_u32 s{SG_WOFF}, s{SG_WOFF}, s{S_T}")
    a(f"s_mul_i32 s{SG_WOFF}, s{SG_WOFF}, 1152")
    a(f"s_mul_i32 s{S_T}, s{SG_NH}, 576")
    a(f"s_add_u32 s{SG_WOFF}, s{SG_WOFF}, s{S_T}")
    a(f"s_mul_i32 s{SG_WLDS}, s{SG_KH}, 18432")
    a(f"s_mul_i32 s{S_T}, s{SG_TBL}, 9216")
    a(f"s_add_u32 s{SG_WLDS}, s{SG_WLDS}, s{S_T}")
    def issue_w():
        out = [[f"s_add_u32 m0, s{SG_WROT}, s{SG_WLDS}"]]
        for i in range(9):
            g = []
            if i % 4 == 0 and i > 0: g += ["s_add_u32 m0, m0, 4096", "s_nop 0"]
            if i == 0: g.append("s_nop 0")
            g.append(f"buffer_load_dwordx4 v{G_WP+i}, s[{S_WD}:{S_WD+3}], s{SG_WOFF} offen offset:{(i%4)*1024} lds")
            out.append(g)
        out.append([f"s_add_u32 s{SG_WOFF}, s{SG_WOFF}, {32*1152}"] + next_rot(SG_WROT, WST, NWST))
        return out
    a.extend(flat(issue_w()))
    a.extend(flat(issue_kv())); a.extend(flat(issue_h(1))); a.extend(flat(issue_w()))
    a("v_and_b32 v17, 15, v1")
    a("v_lshrrev_b32 v18, 2, v17")
    a("v_and_b32 v17, 3, v17")
    a("v_lshlrev_b32 v17, 3, v17")
    a("v_lshrrev_b32 v19, 5, v1")
    a("v_lshl_add_u32 v18, v19, 2, v18")
    a("v_mul_u32_u24 v18, 576, v18")
    a("v_bfe_u32 v19, v1, 4, 1")
    a("v_lshl_add_u32 v17, v19, 5, v17")
    a(f"v_add_u32 v{G_TR}, v18, v17")
    a(f"s_mul_i32 s{S_T}, s{SG_KH}, 18432")
    a(f"v_add_u32 v{G_TR}, s{S_T}, v{G_TR}")
    a("s_waitcnt vmcnt(18)")
    stamp_at(a, 1)
    a("s_barrier")
    stamp_at(a, 2)
    def phase(p, do_w, do_kv, hslot, first=False):
        groups = []
        if do_kv: groups += issue_kv()
        if do_w and 'nogl' not in EXP: groups += issue_h((hslot + 2) % 3) + issue_w()
        a(f"v_add_u32 v{G_TRC}, s{SG_CUR}, v{G_TR}")
        if 'nogm' in EXP:
            for g in groups: a.extend(g)
            a.extend(next_rot(SG_CUR, WST, NWST)); return
        seq = [(ks, nt) for ks in range(2) for nt in range(9)]
        def rd(i):
            ks, nt = seq[i]
            r = G_RING + 4*(i % 4)
            off = ks*9216 + nt*64
            return [f"ds_read_b64_tr_b16 {vr(r,2)}, v{G_TRC} offset:{off}", f"ds_read_b64_tr_b16 {vr(r+2,2)}, v{G_TRC} offset:{off+4608}"]
        for i in range(3): a.extend(rd(i))
        gi = 0
        for i in range(18):
            ks, nt = seq[i]
            n_out = min(2, 17 - i)
            a(f"s_waitcnt lgkmcnt({2*n_out})")
            r = G_RING + 4*(i % 4)
            acc = vr(G_ACC + 16*nt, 16)
            c = "0" if (first and ks == 0) else acc
            a(f"v_mfma_f32_32x32x16_bf16 {acc}, {vr(r,4)}, {vr(G_H + 8*hslot + 4*ks, 4)}, {c}")
            if i + 3 < 18: a.extend(rd(i + 3))
            tgt = min(len(groups), (len(groups) * (i + 1) + 9) // 10)
            while gi < tgt:
                a.extend(groups[gi]); gi += 1
        a.extend(next_rot(SG_CUR, WST, NWST))
    nvm = lambda w, kv: (11 if (w and 'nogl' not in EXP) else 0) + (7 if kv else 0)
    def ph(p):
        w, kv = p <= 15, p <= 13
        phase(p, w, kv, p % 3, first=(p == 0))
        if p < 17:
            a(f"s_waitcnt vmcnt({nvm(w, kv)})")
            a("s_barrier")
    ph(0)
    a(f"s_mov_b32 s{SG_CNT}, 0")
    a.label("k2_gloop")
    for q in range(3): ph(1 + q)
    a(f"s_add_u32 s{SG_CNT}, s{SG_CNT}, 1")
    a(f"s_cmp_lt_u32 s{SG_CNT}, 4")
    a("s_cbranch_scc1 k2_gloop")
    for p in range(13, 18): ph(p)
    stamp_at(a, 4)
    a("s_nop 15")
    a(f"s_mul_i32 s{S_T}, s{SG_TBL}, 36864")
    a(f"v_add_u32 v17, s{S_T}, v{G_L16}")
    a(f"s_cmp_eq_u32 s{SG_KH}, 0")
    a("s_cbranch_scc1 k2_gred")
    for i in range(36):
        a(f"ds_write_b128 v17, {vr(G_ACC + 4*i, 4)} offset:{i*1024}")
    a("s_waitcnt lgkmcnt(0)")
    a("s_barrier")
    stamp_at(a, 5)
    stamp_out(a, 6, 6)
    rt_end(a, 2, 6, S_W0)
    a("s_endpgm")
    a.label("k2_gred")
    a(f"s_lshl_b32 s{S_T}, s{SG_S}, 6")
    a(f"s_add_u32 s{S_T}, s{S_T}, s{SG_TB}")
    a(f"s_mul_i32 s{S_T}, s{S_T}, 18")
    a(f"s_mul_i32 s{S_T2}, s{SG_NH}, 9")
    a(f"s_add_u32 s{S_T}, s{S_T}, s{S_T2}")
    a(f"s_lshl_b32 s{S_T}, s{S_T}, 11")
    a(f"s_add_u32 s{S_T}, s{S_T}, {WS_P}")
    a("s_barrier")
    for nt in range(9):
        for q in range(4):
            a(f"ds_read_b128 {vr(G_RING + 4*q, 4)}, v17 offset:{(4*nt+q)*1024}")
        for q in range(4):
            i = 4*nt + q
            a(f"s_waitcnt lgkmcnt({3-q})")
            for e in range(4):
                a(f"v_add_f32 v{G_ACC+4*i+e}, v{G_ACC+4*i+e}, v{G_RING+4*q+e}")
        P = G_H + 8 * (nt % 2)
        for k in range(8):
            a(f"v_cvt_pk_bf16_f32 v{P+k}, v{G_ACC+16*nt+2*k}, v{G_ACC+16*nt+2*k+1}")
        a(f"buffer_store_dwordx4 {vr(P,4)}, v{G_L16}, s[{S_WS}:{S_WS+3}], s{S_T} offen")
        a(f"buffer_store_dwordx4 {vr(P+4,4)}, v{G_L16}, s[{S_WS}:{S_WS+3}], s{S_T} offen offset:1024")
        a(f"s_add_u32 s{S_T}, s{S_T}, 2048")
    a("s_waitcnt vmcnt(0)")
    stamp_at(a, 5)
    stamp_out(a, 6, 6)
    rt_end(a, 2, 6, S_W0)
    a("s_endpgm")

def gen_k2(stampit=False, exp=()):
    global STAMP, EXP
    STAMP = stampit
    EXP = set(exp)
    a = Asm()
    name = "k2_attn_kernel"
    a.lines.append(kernel_header(name).rstrip("\n"))
    a("s_cmp_ge_u32 s2, 256")
    a("s_cbranch_scc1 k2_end")
    stamp_at(a, 0)
    rt_begin(a, 2)
    a(f"s_load_dwordx2 s[4:5], s[0:1], {KA_WD}")
    a(f"s_load_dwordx2 s[6:7], s[0:1], {KA_WS}")
    a("v_and_b32 v1, 63, v0")
    a("v_lshrrev_b32 v2, 6, v0")
    a(f"s_and_b32 s{S_XCD}, s2, 7")
    a(f"v_readfirstlane_b32 s{S_W}, v2")
    a(f"s_lshr_b32 s{S_SLOT}, s2, 3")
    a("s_waitcnt lgkmcnt(0)")
    srd(a, S_WS, 6, WS_END)
    srd(a, S_WD, 4, 4608*576*2)
    a(f"s_mov_b32 s{S_W0}, s{S_W}")
    a(f"s_cmp_ge_u32 s{S_W}, 4")
    a("s_cbranch_scc1 k2_gemm")
    gen_attn(a)
    a.label("k2_gemm")
    gen_gemm(a)
    a.label("k2_end")
    a("s_endpgm")
    return a.text() + kernel_desc(name, 256, 256, 100), name
```

```python
from common import *
from k0 import float_hex
K3_LDS = 73728
INVC2 = 1.0 / 1.4426950408889634 ** 2
RS = 272
def gen_k3():
    a = Asm()
    name = "k3_out_kernel"
    a.lines.append(kernel_header(name).rstrip("\n"))
    a("s_cmp_ge_u32 s2, 288")
    a("s_cbranch_scc1 k3_end")
    rt_begin(a, 3)
    a(f"s_load_dwordx2 s[6:7], s[0:1], {KA_WS}")
    a(f"s_load_dwordx2 s[4:5], s[0:1], {KA_WO}")
    a(f"s_load_dwordx2 s[24:25], s[0:1], {KA_X}")
    a(f"s_load_dwordx2 s[26:27], s[0:1], {KA_OUT}")
    a("v_and_b32 v1, 63, v0")
    a("v_lshrrev_b32 v2, 6, v0")
    a("v_lshlrev_b32 v9, 4, v1")
    a("v_readfirstlane_b32 s28, v2")
    a("s_and_b32 s29, s2, 31")
    a("s_lshr_b32 s30, s2, 5")
    a("s_and_b32 s31, s28, 1")
    a("s_lshr_b32 s32, s28, 1")
    a("s_lshl_b32 s33, s29, 1")
    a("s_add_u32 s33, s33, s31")
    a("s_waitcnt lgkmcnt(0)")
    srd(a, 12, 6, WS_END)
    nvm = [0]
    def vm(ins): a(ins); nvm[0] += 1; return nvm[0]
    assert WS_OX == WS_OF + 32*64*1024
    a("s_mul_i32 s37, s32, 18")
    a("s_lshl_b32 s37, s37, 6")
    a("s_add_u32 s37, s37, s33")
    a("s_lshl_b32 s37, s37, 10")
    a(f"s_add_u32 s37, s37, {WS_OF}")
    oidx = []
    for i in range(18):
        oidx.append(vm(f"buffer_load_dwordx4 {vr(64+4*i,4)}, v9, s[12:15], s37 offen"))
        a(f"s_add_u32 s37, s37, {64*1024}")
    a("s_lshl_b32 s37, s32, 7")
    a("s_add_u32 s37, s37, s33")
    a("s_mul_i32 s37, s37, 18")
    a("s_lshl_b32 s38, s30, 1")
    a("s_add_u32 s37, s37, s38")
    a("s_lshl_b32 s37, s37, 11")
    a(f"s_add_u32 s37, s37, {WS_P}")
    for sl in range(2):
        for q in range(4):
            vm(f"buffer_load_dwordx4 {vr(160+16*sl+4*q,4)}, v9, s[12:15], s37 offen offset:{q*1024}")
        if sl == 0: a(f"s_add_u32 s37, s37, {64*18*2048}")
    srd(a, 8, 4, 576*576*2)
    a("v_lshrrev_b32 v3, 3, v1")
    a("v_and_b32 v4, 7, v1")
    a("v_bfe_u32 v5, v3, 1, 1")
    a("v_lshlrev_b32 v5, 2, v5")
    a("v_xor_b32 v4, v4, v5")
    a("v_lshlrev_b32 v4, 4, v4")
    a("v_mul_u32_u24 v5, 1152, v3")
    a("v_add_u32 v5, v5, v4")
    a("v_lshrrev_b32 v6, 2, v3")
    a("v_lshlrev_b32 v6, 2, v6")
    a("v_bfe_u32 v7, v3, 1, 1")
    a("v_add_u32 v6, v6, v7")
    a("v_mul_u32_u24 v6, 18, v6")
    a("v_and_b32 v7, 1, v3")
    a("v_add3_u32 v6, v6, v7, 16")
    a("v_mul_u32_u24 v6, 1152, v6")
    a("v_add_u32 v6, v6, v4")
    a("s_mul_i32 s35, s32, 18")
    a("s_mul_i32 s36, s31, 9")
    a("s_add_u32 s35, s35, s36")
    a("s_lshl_b32 s36, s30, 7")
    a("s_lshl_b32 s39, s35, 11")
    a(f"s_mul_i32 s38, s35, {18*1152}")
    a("s_add_u32 s38, s38, s36")
    for i in range(9):
        lab = f"k3_x{i}"
        if i >= 5:
            a("s_cmp_eq_u32 s35, 27")
            a(f"s_cbranch_scc1 {lab}")
        for hh in range(2):
            a(f"s_add_u32 m0, s39, {i*2048 + hh*1024}")
            a(f"s_add_u32 s40, s38, {(i*18 + 8*hh)*1152}")
            a("buffer_load_dwordx4 v5, s[8:11], s40 offen lds")
        if i >= 5:
            a(f"s_branch {lab}e")
            a.label(lab)
            for hh in range(2):
                a(f"s_add_u32 m0, s39, {i*2048 + hh*1024}")
                a(f"s_add_u32 s40, s36, {((i-5)*8*18 + 36*hh)*1152}")
                a("buffer_load_dwordx4 v6, s[8:11], s40 offen lds")
            a.label(lab + "e")
        nvm[0] += 2
    wo_done = nvm[0]
    srd(a, 16, 24, S_TOK*D*2)
    srd(a, 20, 26, S_TOK*D*2)
    a("v_lshrrev_b32 v10, 3, v0")
    a("v_and_b32 v11, 7, v0")
    a("s_lshl_b32 s37, s29, 6")
    a("v_add_u32 v12, s37, v10")
    a("v_mul_u32_u24 v12, 1152, v12")
    a("v_lshl_add_u32 v12, v11, 4, v12")
    for r in range(2):
        a(f"s_add_u32 s41, s36, {r*32*1152}" if r else "s_mov_b32 s41, s36")
        vm(f"buffer_load_dwordx4 {vr(192+4*r,4)}, v12, s[16:19], s41 offen")
    total = nvm[0]
    a("v_and_b32 v13, 15, v1")
    a("v_lshrrev_b32 v14, 2, v13")
    a("v_and_b32 v13, 3, v13")
    a("v_lshlrev_b32 v13, 3, v13")
    a("v_lshrrev_b32 v15, 5, v1")
    a("v_lshl_add_u32 v16, v15, 2, v14")
    a("v_lshl_add_u32 v13, v16, 7, v13")
    a("v_bfe_u32 v16, v1, 4, 1")
    a("v_lshl_add_u32 v13, v16, 5, v13")
    a("v_bfe_u32 v16, v14, 1, 1")
    a("s_mul_i32 s37, s32, 36864")
    a("v_add_u32 v13, s37, v13")
    a("v_lshl_add_u32 v14, v16, 6, v13")
    a("v_xor_b32 v16, 1, v16")
    a("v_lshl_add_u32 v13, v16, 6, v13")
    a(f"s_waitcnt vmcnt({min(total - wo_done, 63)})")
    a("s_barrier")
    seq = [(i, n) for i in range(18) for n in range(2)]
    def rd(f):
        i, n = seq[f]
        r = 40 + 4*(f % 6)
        reg = 14 if n == 0 else 13
        return [f"ds_read_b64_tr_b16 {vr(r,2)}, v{reg} offset:{i*2048}", f"ds_read_b64_tr_b16 {vr(r+2,2)}, v{reg} offset:{i*2048+1024}"]
    for f in range(4): a.extend(rd(f))
    for f in range(36):
        i, n = seq[f]
        if f + 4 < 36: a.extend(rd(f + 4))
        a(f"s_waitcnt lgkmcnt({2*min(4, 35-f)})")
        acc = vr(208 + 16*n, 16)
        c = "0" if i == 0 else acc
        a(f"v_mfma_f32_32x32x16_bf16 {acc}, {vr(40+4*(f%6),4)}, {vr(64+4*i,4)}, {c}")
    a("s_nop 7")
    T = 64
    for n in range(2):
        for k in range(8):
            a(f"v_lshlrev_b32 v{T+2*k}, 16, v{160+8*n+k}")
            a(f"v_and_b32 v{T+2*k+1}, 0xffff0000, v{160+8*n+k}")
            a(f"v_lshlrev_b32 v{T+16+2*k}, 16, v{176+8*n+k}")
            a(f"v_and_b32 v{T+16+2*k+1}, 0xffff0000, v{176+8*n+k}")
        for k in range(16): a(f"v_add_f32 v{T+k}, v{T+k}, v{T+16+k}")
        if n == 0: a(f"s_mov_b32 s37, {float_hex(INVC2)}")
        for k in range(16): a(f"v_fma_f32 v{208+16*n+k}, v{T+k}, s37, v{208+16*n+k}")
    a("s_waitcnt lgkmcnt(0)")
    a("s_barrier")
    a("v_and_b32 v16, 31, v1")
    a("s_lshl_b32 s37, s31, 5")
    a("v_add_u32 v16, s37, v16")
    a(f"v_mul_u32_u24 v16, {RS}, v16")
    a("v_lshl_add_u32 v16, v15, 4, v16")
    a(f"s_mul_i32 s37, s32, {64*RS}")
    a("v_add_u32 v16, s37, v16")
    for n in range(2):
        for j in range(4):
            a(f"ds_write_b128 v16, {vr(208+16*n+4*j,4)} offset:{(32*n + 8*j)*4}")
    a("s_waitcnt lgkmcnt(0)")
    a("s_barrier")
    a(f"v_mul_u32_u24 v16, {RS}, v10")
    a("v_lshl_add_u32 v16, v11, 5, v16")
    for r in range(2):
        for ar_ in range(2):
            for q in range(2):
                a(f"ds_read_b128 {vr(64+16*r+8*ar_+4*q,4)}, v16 offset:{ar_*64*RS + r*32*RS + q*16}")
    a("s_waitcnt vmcnt(0) lgkmcnt(0)")
    for r in range(2):
        B = 64 + 16*r
        for k in range(8): a(f"v_add_f32 v{B+k}, v{B+k}, v{B+8+k}")
        for k in range(4):
            a(f"v_lshlrev_b32 v{B+8+2*k}, 16, v{192+4*r+k}")
            a(f"v_and_b32 v{B+8+2*k+1}, 0xffff0000, v{192+4*r+k}")
        for k in range(8): a(f"v_add_f32 v{B+k}, v{B+k}, v{B+8+k}")
        for k in range(4): a(f"v_cvt_pk_bf16_f32 v{100+4*r+k}, v{B+2*k}, v{B+2*k+1}")
        a(f"s_add_u32 s41, s36, {r*32*1152}" if r else "s_mov_b32 s41, s36")
        a(f"buffer_store_dwordx4 {vr(100+4*r,4)}, v12, s[20:23], s41 offen")
    if RT["on"]: a("s_waitcnt vmcnt(0)")
    rt_end(a, 3, 6, 28)
    a.label("k3_end")
    a("s_endpgm")
    a.label("k3_code_end")
    return a.text() + kernel_desc(name, 256, 256, 100 if RT['on'] else 48), name
```

```python
import sys
from common import *
from k0 import gen_k0
from k1b import gen_k1, K1_LDS
from k2b import gen_k2, K2_LDS
from k3c import gen_k3, K3_LDS
HEADER = open('parallel_sum__softmax_full_mha__swiglu_ffn__prompt.s.ref').read().split("; Override launch")[0]
def build(kernels, launches):
    s = HEADER
    for (n,g,b,l) in launches:
        s += f"; @launch kernel={n} grid=({g},1,1) block=({b},1,1) lds={l}\n"
    s += '.amdgcn_target "amdgcn-amd-amdhsa--gfx950"\n.text\n'
    for k in kernels: s += k
    return s
if __name__ == "__main__":
    RT["on"] = 'rt' in sys.argv
    CODEPF["on"] = 'nocpf' not in sys.argv
    ks = []; launches = []
    t, n = gen_k0(); ks.append(t); launches.append((n,256,256,0))
    t, n = gen_k1(stampit=('stamp' in sys.argv)); ks.append(t); launches.append((n,256,256,K1_LDS))
    t, n = gen_k2(stampit=('stamp' in sys.argv), exp=[x for x in sys.argv if x in ('nogm','nogl','noa','nods','nopv','nox8','noexp','nowait','nord','nobar','forceslow','margin0','prio0','prioG','gnord','gnomf','gsleep')]); ks.append(t); launches.append((n,256,512,K2_LDS))
    t, n = gen_k3(); ks.append(t); launches.append((n,288,256,K3_LDS))
    import re
    sfk = [1, 2]
    for x in sys.argv:
        if x.startswith("sfk="): sfk = [int(c) for c in x[4:]]
    ks = [re.sub(r"(buffer_store_\w+ [^\n;]*offen[^\n;]*)", lambda m: m.group(1).rstrip() + " sc1", k) if i in sfk else k for i, k in enumerate(ks)]
    out = sys.argv[1] if len(sys.argv) > 1 else "out.s"
    open(out, "w").write(build(ks, launches))
    print("wrote", out)
```

```python
S_TOK = 2048
D = 576
F = 4608
H = 32
DH = 18
WS_XF  = 0x0
WS_QKP = 0x240000
WS_VF  = 0x6C0000
WS_OF  = 0x900000
WS_OX  = 0xB00000
WS_HF  = 0xC00000
WS_P   = 0x1E00000
WS_END = 0x3000000
KA_X, KA_WQKV, KA_WO, KA_BX, KA_WG, KA_WU, KA_WD, KA_OUT, KA_DBG, KA_WS = [8*i for i in range(10)]

class Asm:
    def __init__(self):
        self.lines = []
    def __call__(self, s=""):
        for l in s.split("\n"):
            l = l.strip()
            if l: self.lines.append(l)
    def label(self, l): self.lines.append(l + ":")
    def extend(self, lst):
        for l in lst: self(l)
    def text(self):
        out = []
        for l in self.lines:
            out.append(l if l.endswith(":") or l.startswith(".") else "  " + l)
        return "\n".join(out) + "\n"

def vr(base, n=1):
    return f"v{base}" if n == 1 else f"v[{base}:{base+n-1}]"
def ar(base, n=1):
    return f"a{base}" if n == 1 else f"a[{base}:{base+n-1}]"
def sr(base, n=1):
    return f"s{base}" if n == 1 else f"s[{base}:{base+n-1}]"

def srd(a, sreg, ptr, size):
    a(f"s_mov_b32 s{sreg}, s{ptr}")
    a(f"s_and_b32 s{sreg+1}, s{ptr+1}, 0xffff")
    a(f"s_mov_b32 s{sreg+2}, {size}")
    a(f"s_mov_b32 s{sreg+3}, 0x20000")

def kernel_header(name):
    return f".globl {name}\n.p2align 8\n.type {name},@function\n{name}:\n"

def kernel_desc(name, vgpr, accum, sgpr=100):
    return f""".section .rodata,"a"
.p2align 6
.amdhsa_kernel {name}
  .amdhsa_next_free_vgpr {vgpr}
  .amdhsa_next_free_sgpr {sgpr}
  .amdhsa_accum_offset {accum}
  .amdhsa_group_segment_fixed_size 0
  .amdhsa_kernarg_size 80
  .amdhsa_user_sgpr_count 2
  .amdhsa_user_sgpr_kernarg_segment_ptr 1
  .amdhsa_system_sgpr_workgroup_id_x 1
  .amdhsa_float_denorm_mode_32 3
.end_amdhsa_kernel
.text
"""

def interleave(backbone, fillers, per=None, start=0):
    out = []
    nb = len(backbone) - start
    nf = len(fillers)
    k = 0
    for i, b in enumerate(backbone):
        out.append(b)
        if i >= start:
            tgt = (nf * (i - start + 1) + nb - 1) // nb if per is None else min(nf, per * (i - start + 1))
            while k < tgt:
                out.append(fillers[k]); k += 1
    out.extend(fillers[k:])
    return out

RT_BASE = WS_END + 0x40000
RT = {"on": False}
def rt_begin(a, kidx):
    if RT["on"]: a("s_memrealtime s[96:97]")
def rt_end(a, kidx, wsptr, wave_sreg):
    if not RT["on"]: return
    a("s_memrealtime s[98:99]")
    a("s_waitcnt lgkmcnt(0)")
    a("s_lshl_b32 s4, s2, 3")
    a(f"s_add_u32 s4, s4, s{wave_sreg}")
    a("s_lshl_b32 s4, s4, 3")
    a(f"s_add_u32 s4, s4, {RT_BASE + kidx*0x8000}")
    a("v_mov_b32 v12, s4")
    a("v_mov_b32 v14, s96")
    a("v_mov_b32 v15, s98")
    a(f"global_store_dwordx2 v12, v[14:15], s[{wsptr}:{wsptr+1}]")
    a("s_waitcnt vmcnt(0)")

CODEPF = {"on": True}
def code_prefetch(a, start_label, end_label, sreg, vtmp, vdst, lane_reg, nwg_reg_expr=None, uid=""):
    if not CODEPF["on"]: return []
    o = []
    o.append(f"s_getpc_b64 s[{sreg}:{sreg+1}]")
    o.append(f"cpf_{uid}:")
    o.append(f"s_add_u32 s{sreg}, s{sreg}, {start_label}-cpf_{uid}")
    o.append(f"s_addc_u32 s{sreg+1}, s{sreg+1}, 0" )
    o.append(f"s_lshr_b32 s{sreg+2}, s2, 3")
    o.append(f"s_lshl_b32 s{sreg+2}, s{sreg+2}, 12")
    o.append(f"v_lshlrev_b32 v{vtmp}, 6, v{lane_reg}")
    o.append(f"v_add_u32 v{vtmp}, s{sreg+2}, v{vtmp}")
    o.append(f"v_min_u32 v{vtmp}, {end_label}-{start_label}-4, v{vtmp}")
    o.append(f"global_load_dword v{vdst}, v{vtmp}, s[{sreg}:{sreg+1}]")
    return o
```

```python
from common import *
PREFETCH = True
def gen_k0():
    a = Asm()
    name = "k0_ln_kernel"
    a.lines.append(kernel_header(name).rstrip("\n"))
    a("s_cmp_ge_u32 s2, 256")
    a("s_cbranch_scc1 k0_end")
    rt_begin(a, 0)
    a(f"s_load_dwordx2 s[4:5], s[0:1], {KA_X}")
    a(f"s_load_dwordx2 s[6:7], s[0:1], {KA_WS}")
    if PREFETCH:
        a(f"s_load_dwordx2 s[24:25], s[0:1], {KA_WQKV}")
        a(f"s_load_dwordx4 s[28:31], s[0:1], {KA_WG}")
    a("v_lshrrev_b32 v1, 5, v0")
    a("v_and_b32 v2, 31, v0")
    a("s_lshl_b32 s3, s2, 3")
    a("v_add_u32 v3, s3, v1")
    a("v_mul_u32_u24 v4, 1152, v3")
    a("v_lshl_add_u32 v4, v2, 4, v4")
    a("v_add_u32 v5, 1024, v4")
    a("v_mov_b32 v6, 0x7ffffff0")
    a("v_cmp_gt_u32 vcc, 8, v2")
    a("s_nop 1")
    a("v_cndmask_b32 v5, v6, v5, vcc")
    a("s_waitcnt lgkmcnt(0)")
    srd(a, 8, 4, S_TOK*D*2)
    srd(a, 12, 6, WS_END)
    a("buffer_load_dwordx4 v[8:11], v4, s[8:11], 0 offen")
    a("buffer_load_dwordx4 v[12:15], v4, s[8:11], 0 offen offset:512")
    a("buffer_load_dwordx4 v[16:19], v5, s[8:11], 0 offen")
    if PREFETCH:
        srd(a, 32, 24, 576*1728*2); srd(a, 36, 28, 576*4608*2); srd(a, 40, 30, 576*4608*2)
        a("s_and_b32 s16, s2, 7")
        a("s_lshr_b32 s17, s2, 3")
        a("s_mul_i32 s18, s17, 18")
        a("s_mul_i32 s19, s18, 9216")
        a("s_mul_i32 s20, s16, 1152")
        a("s_add_u32 s19, s19, s20")
        for r in range(2):
            a(f"v_add_u32 v52, {256*r}, v0")
            a("v_mul_u32_u24 v53, 3641, v52")
            a("v_lshrrev_b32 v53, 16, v53")
            a("v_mul_u32_u24 v54, 18, v53")
            a("v_sub_u32 v54, v52, v54")
            a("v_mul_u32_u24 v53, 9216, v53")
            a("v_lshl_add_u32 v53, v54, 6, v53")
            if r == 1:
                a("v_cmp_gt_u32 vcc, 324, v52")
                a("s_nop 1")
                a("v_cndmask_b32 v53, v6, v53, vcc")
            a(f"buffer_load_dword v{55+2*r}, v53, s[36:39], s19 offen")
            a(f"buffer_load_dword v{56+2*r}, v53, s[40:43], s19 offen")
        a("s_lshl_b32 s20, s16, 9")
        a("s_cmp_eq_u32 s16, 6")
        a("s_cselect_b32 s20, 2944, s20")
        a("s_cmp_eq_u32 s16, 7")
        a("s_cselect_b32 s20, 3200, s20")
        a("s_mul_i32 s19, s18, 3456")
        a("s_add_u32 s19, s19, s20")
        a("v_lshrrev_b32 v53, 3, v0")
        a("v_and_b32 v54, 7, v0")
        a("v_mul_u32_u24 v53, 3456, v53")
        a("v_lshl_add_u32 v53, v54, 6, v53")
        a("v_cmp_gt_u32 vcc, 144, v0")
        a("s_nop 1")
        a("v_cndmask_b32 v53, v6, v53, vcc")
        a("buffer_load_dword v59, v53, s[32:35], s19 offen")
        a("v_cmp_gt_u32 vcc, 8, v2")
    if CODEPF["on"]:
        a("v_and_b32 v60, 63, v0")
        a.extend(code_prefetch(a, "k1_gemm1_kernel", "k3_code_end", 44, 61, 62, 60, uid="k0"))
    a("v_lshrrev_b32 v44, 4, v3")
    a("v_mul_u32_u24 v44, 18, v44")
    a("v_lshrrev_b32 v45, 2, v2")
    a("v_add_u32 v44, v44, v45")
    a("v_lshlrev_b32 v44, 6, v44")
    a("v_and_b32 v45, 3, v2")
    a("v_lshlrev_b32 v45, 4, v45")
    a("v_and_b32 v46, 15, v3")
    a("v_add3_u32 v44, v44, v45, v46")
    a("v_lshlrev_b32 v44, 4, v44")
    a("v_add_u32 v45, 8192, v44")
    a("v_add_u32 v46, 16384, v44")
    a("v_cndmask_b32 v46, v6, v46, vcc")
    a(f"s_waitcnt vmcnt({(5 if PREFETCH else 0) + (1 if CODEPF['on'] else 0)})")
    for q in range(12):
        a(f"v_lshlrev_b32 v{20+2*q}, 16, v{8+q}")
        a(f"v_and_b32 v{21+2*q}, 0xffff0000, v{8+q}")
    a("v_add_f32 v47, v20, v21")
    for q in range(2, 24):
        a(f"v_add_f32 v47, v47, v{20+q}")
    def reduce32(reg):
        for x in (16, 8, 4, 2, 1):
            a(f"ds_swizzle_b32 v48, v{reg} offset:{(x<<10)|0x1f}")
            a("s_waitcnt lgkmcnt(0)")
            a(f"v_add_f32 v{reg}, v{reg}, v48")
    reduce32(47)
    a(f"v_mul_f32 v47, {float_hex(1.0/576)}, v47")
    for q in range(24):
        a(f"v_sub_f32 v{20+q}, v{20+q}, v47")
    for q in range(16, 24):
        a(f"v_cndmask_b32 v{20+q}, 0, v{20+q}, vcc")
    a("v_mul_f32 v49, v20, v20")
    for q in range(1, 24):
        a(f"v_fmac_f32 v49, v{20+q}, v{20+q}")
    reduce32(49)
    a(f"v_mov_b32 v50, {float_hex(1e-5)}")
    a(f"v_fmac_f32 v50, {float_hex(1.0/576)}, v49")
    a("v_rsq_f32 v50, v50")
    a("s_nop 0")
    a(f"v_mul_f32 v50, {float_hex(1.4426950408889634)}, v50")
    for q in range(24):
        a(f"v_mul_f32 v{20+q}, v{20+q}, v50")
    for q in range(12):
        a(f"v_cvt_pk_bf16_f32 v{8+q}, v{20+2*q}, v{21+2*q}")
    a("buffer_store_dwordx4 v[8:11], v44, s[12:15], 0 offen")
    a("buffer_store_dwordx4 v[12:15], v45, s[12:15], 0 offen")
    a("buffer_store_dwordx4 v[16:19], v46, s[12:15], 0 offen")
    a("s_waitcnt vmcnt(0)")
    if RT["on"]:
        a("v_lshrrev_b32 v1, 6, v0"); a("s_nop 0"); a("v_readfirstlane_b32 s20, v1")
    rt_end(a, 0, 6, 20)
    a.label("k0_end")
    a("s_endpgm")
    return a.text() + kernel_desc(name, 64, 64, 100 if RT['on'] else 52), name

import struct
def float_hex(x):
    return "0x%08x" % struct.unpack("<I", struct.pack("<f", x))[0]
```

```python
from common import *
from k0 import float_hex

WST = 36864
NWST = 3
KV0 = WST * NWST
KVST = 12800
NKV = 4
KV_K, KV_X, KV_V = 0, 4096, 4608
K2_LDS = KV0 + NKV * KVST
CMARGIN = 90.0
FORCE_SLOW = False
INVC = 1.0 / 1.4426950408889634
STAMP = False
EXP = set()

S_WS, S_WD = 8, 12
S_W, S_XCD, S_SLOT = 16, 17, 18
S_T, S_T2, S_T3 = 19, 20, 21
S_W0 = 22

def stamp_at(a, i):
    if STAMP: a(f"s_memtime s[{64+2*i}:{65+2*i}]")
def stamp_out(a, n, wsptr):
    if not STAMP: return
    a("s_waitcnt lgkmcnt(0)")
    a("s_lshl_b32 s4, s2, 3")
    a(f"s_add_u32 s4, s4, s{S_W0}")
    a("s_lshl_b32 s4, s4, 6")
    a(f"s_add_u32 s4, s4, {WS_END + 0x20000}")
    a("v_mov_b32 v12, s4")
    for i in range(n):
        a(f"v_mov_b32 v13, s{64+2*i}")
        a(f"global_store_dword v12, v13, s[{wsptr}:{wsptr+1}] offset:{4*i}")
    a("s_waitcnt vmcnt(0)")

A_Q1 = [16, 20]
A_Q2A = [24, 26]
A_Q2B = [28, 30]
A_K1 = [32, 36]
A_KX = [40, 44]
A_V = [48, 56]
A_S = [64, 80]
A_P = [96, 104]
A_O = [112, 128]
A_NM = [144, 160]
A_TMP = 176
A_RL16, A_RX16, A_L16, A_L4 = 4, 5, 9, 10
SA_H, SA_TBQ, SA_CNT = 24, 25, 27

def qk_mfmas(sbuf, kbuf, kxbuf, kt, b, cinit):
    S = vr(A_S[sbuf], 16)
    kx = vr(A_KX[kxbuf] + 2 * (kt // 2), 2)
    q2 = vr((A_Q2A if kt % 2 == 0 else A_Q2B)[b], 2)
    return [f"v_mfma_f32_32x32x8_bf16 {S}, {kx}, {q2}, {cinit}",
            f"v_mfma_f32_32x32x16_bf16 {S}, {vr(A_K1[kbuf],4)}, {vr(A_Q1[b],4)}, {S}"]
def pv_mfmas(pbuf, vbuf, b):
    O = vr(A_O[b], 16)
    return [f"v_mfma_f32_32x32x16_bf16 {O}, {vr(A_V[vbuf],4)}, {vr(A_P[pbuf],4)}, {O}",
            f"v_mfma_f32_32x32x16_bf16 {O}, {vr(A_V[vbuf]+4,4)}, {vr(A_P[pbuf]+4,4)}, {O}"]
def k1_read(kbuf, slot, kt): return [f"ds_read_b128 {vr(A_K1[kbuf],4)}, v{A_RL16} offset:{slot*KVST + KV_K + kt*1024}"]
def kx_read(kxbuf, slot): return [f"ds_read_b128 {vr(A_KX[kxbuf],4)}, v{A_RX16} offset:{slot*KVST}"]
def v_reads(vbuf, slot, kt):
    return [f"ds_read_b128 {vr(A_V[vbuf],4)}, v{A_RL16} offset:{slot*KVST + KV_V + 2*kt*1024}",
            f"ds_read_b128 {vr(A_V[vbuf]+4,4)}, v{A_RL16} offset:{slot*KVST + KV_V + (2*kt+1)*1024}"]

def attn_step(c, kt, b, do_qk, do_pv, pre):
    j = 2 * kt + b
    sb, nb = j % 2, (j + 1) % 2
    S, P = A_S[sb], A_P[sb]
    nkt = kt if b == 0 else kt + 1
    nc = c + (1 if nkt == 4 else 0)
    nkt %= 4
    nbq = 1 - b
    qk = qk_mfmas(nb, nkt % 2, nc % 2, nkt, nbq, vr(A_NM[nbq], 16)) if do_qk else []
    pkt = kt if b == 1 else kt - 1
    pv = pv_mfmas(nb, pkt % 2, nbq) if do_pv else []
    order = []
    if qk: order.append(qk[0])
    if pv: order.append(pv[0])
    if qk: order.append(qk[1])
    if pv: order.append(pv[1])
    ex = [f"v_exp_f32 v{S+k}, v{S+k}" for k in range(16)]
    cv = [f"v_cvt_pk_bf16_f32 v{P+k}, v{S+2*k}, v{S+2*k+1}" for k in range(8)]
    out = []
    waits = [x for x in pre if x.startswith("s_waitcnt") or x == "s_barrier"]
    reads = [x for x in pre if x not in waits]
    out += waits
    for g in range(4):
        if g < len(order): out.append(order[g])
        if g == 0: out += reads
        out += ex[4*g:4*g+4]
        if g >= 1: out += cv[2*(g-1):2*(g-1)+2]
    out += cv[6:8]
    return out

def gen_attn(a):
    a(f"s_lshl_b32 s{SA_H}, s{S_XCD}, 2")
    a(f"s_and_b32 s{S_T}, s{S_SLOT}, 3")
    a(f"s_add_u32 s{SA_H}, s{SA_H}, s{S_T}")
    a(f"s_lshr_b32 s{S_T}, s{S_SLOT}, 2")
    a(f"s_lshl_b32 s{SA_TBQ}, s{S_T}, 3")
    a(f"s_lshl_b32 s{S_T}, s{S_W}, 1")
    a(f"s_add_u32 s{SA_TBQ}, s{SA_TBQ}, s{S_T}")
    a("v_and_b32 v2, 31, v1")
    a(f"v_lshlrev_b32 v{A_L4}, 2, v2")
    a("v_lshrrev_b32 v3, 5, v1")
    a(f"v_lshl_add_u32 v11, v3, 15, v{A_L4}")
    a(f"s_mul_i32 s{S_T}, s{SA_H}, {9*8192}")
    a(f"s_add_u32 s{S_T}, s{S_T}, {WS_QKP}")
    KT = A_TMP + 8
    a(f"s_add_u32 s{S_T3}, s{S_T}, {288*8192}")
    for kt in range(4):
        for j in range(4):
            a(f"s_add_u32 s{S_T2}, s{S_T3}, {j*8192 + kt*128}")
            a(f"buffer_load_dword v{KT+4*kt+j}, v11, s[{S_WS}:{S_WS+3}], s{S_T2} offen")
        a(f"s_add_u32 s{S_T2}, s{S_T3}, {8*8192 + kt*128}")
        a(f"buffer_load_dword v{A_KX[0]+kt}, v{A_L4}, s[{S_WS}:{S_WS+3}], s{S_T2} offen")
    a(f"s_lshl_b32 s{S_T2}, s{SA_TBQ}, 7")
    a(f"s_add_u32 s{S_T}, s{S_T}, s{S_T2}")
    for b in range(2):
        for j in range(4):
            a(f"s_add_u32 s{S_T2}, s{S_T}, {j*8192 + b*128}")
            a(f"buffer_load_dword v{A_Q1[b]+j}, v11, s[{S_WS}:{S_WS+3}], s{S_T2} offen")
        a(f"s_add_u32 s{S_T2}, s{S_T}, {8*8192 + b*128}")
        a(f"buffer_load_dword v{A_Q2A[b]}, v{A_L4}, s[{S_WS}:{S_WS+3}], s{S_T2} offen")
    if 'prio0' not in EXP and 'prioG' not in EXP: a("s_setprio 2")
    a(f"v_lshlrev_b32 v{A_L16}, 4, v1")
    X = A_TMP
    a(f"v_mov_b32 v{X+1}, 0x3f803f80")
    a(f"v_cmp_eq_u32 vcc, 18, v2")
    a("s_nop 1")
    a(f"v_cndmask_b32 v{X+4}, 0, v{X+1}, vcc")
    a(f"v_mov_b32 v{X+5}, v{X+4}")
    a(f"v_mov_b32 v{X+6}, v{X+4}")
    a(f"v_mov_b32 v{X+7}, v{X+4}")
    a(f"s_mul_i32 s{S_T2}, s{S_W}, {KVST}")
    a(f"s_add_u32 s{S_T2}, s{S_T2}, {KV0 + KV_V}")
    a(f"v_add_u32 v{X+2}, s{S_T2}, v{A_L16}")
    a(f"v_cmp_le_u32 vcc, 18, v2")
    a("s_and_saveexec_b64 s[28:29], vcc")
    for i in range(8):
        a(f"ds_write_b128 v{X+2}, {vr(X+4,4)} offset:{i*1024}")
    a("s_mov_b64 exec, s[28:29]")
    for b in range(2):
        for k in range(16): a(f"v_mov_b32 v{A_O[b]+k}, 0")
    a(f"v_add_u32 v{A_RL16}, {KV0}, v{A_L16}")
    a(f"v_lshlrev_b32 v{A_RX16}, 4, v2")
    a(f"v_add_u32 v{A_RX16}, {KV0 + KV_X}, v{A_RX16}")
    a("v_cmp_gt_u32 vcc, 32, v1")
    a("s_waitcnt vmcnt(0)")
    for b in range(2):
        a(f"v_cndmask_b32 v{A_Q2A[b]}, 0, v{A_Q2A[b]}, vcc")
        a(f"v_mov_b32 v{A_Q2A[b]+1}, 0")
        a(f"v_mov_b32 v{A_Q2B[b]}, 0")
        a(f"v_mov_b32 v{A_Q2B[b]+1}, v{A_Q2A[b]}")
    stamp_at(a, 1)
    M = [A_TMP, A_TMP + 1]
    a(f"v_mov_b32 v{M[0]}, 0xff800000")
    a(f"v_mov_b32 v{M[1]}, 0xff800000")
    def pre_qk(kt, b):
        S = vr(A_S[b], 16)
        kx = vr(A_KX[0] + 2 * (kt // 2), 2)
        q2 = vr((A_Q2A if kt % 2 == 0 else A_Q2B)[b], 2)
        return [f"v_mfma_f32_32x32x8_bf16 {S}, {kx}, {q2}, 0", f"v_mfma_f32_32x32x16_bf16 {S}, {vr(KT+4*kt,4)}, {vr(A_Q1[b],4)}, {S}"]
    seq = [(kt, b) for kt in range(4) for b in range(2)]
    a.extend(pre_qk(0, 0)); a.extend(pre_qk(0, 1))
    a("s_nop 7")
    for idx, (kt, b) in enumerate(seq):
        S = A_S[b]
        if idx == 0: a("s_nop 3")
        for k in range(8):
            a(f"v_max3_f32 v{M[b]}, v{S+2*k}, v{S+2*k+1}, v{M[b]}")
        if idx + 2 < len(seq):
            a.extend(pre_qk(*seq[idx + 2]))
            a("s_nop 1")
    for b in range(2):
        a(f"v_mov_b32 v{A_TMP+2}, v{M[b]}")
        a("s_nop 1")
        a(f"v_permlane32_swap_b32 v{A_TMP+2}, v{M[b]}")
        a("s_nop 1")
        a(f"v_max_f32 v{M[b]}, v{M[b]}, v{A_TMP+2}")
        a(f"v_add_f32 v{M[b]}, {float_hex(CMARGIN)}, v{M[b]}")
        for k in range(16):
            a(f"v_sub_f32 v{A_NM[b]+k}, 0, v{M[b]}")
    a("s_waitcnt lgkmcnt(0)")
    stamp_at(a, 2)
    a("s_barrier")
    stamp_at(a, 3)
    a.extend(k1_read(0, 0, 0)); a.extend(kx_read(0, 0))
    a("s_waitcnt lgkmcnt(0)")
    a.extend(qk_mfmas(0, 0, 0, 0, 0, vr(A_NM[0], 16)))
    a("s_nop 7")
    def chunk(c, first, last):
        slot = c % NKV
        for kt in range(4):
            for b in range(2):
                j = 2*kt + b
                pre = []
                if b == 0:
                    pre = v_reads(kt % 2, slot, kt)
                    if kt < 3: pre += k1_read((kt+1) % 2, slot, kt+1)
                    elif not last: pre += k1_read(0, (c+1) % NKV, 0) + kx_read((c+1) % 2, (c+1) % NKV)
                    if kt == 1: pre = ["s_barrier"] + pre
                else:
                    pre = ["s_waitcnt lgkmcnt(0)"]
                do_qk = not (last and j == 7)
                do_pv = not (first and j == 0)
                st = attn_step(c, kt, b, do_qk, do_pv, pre)
                if 'noa' in EXP: st = [x for x in st if x == "s_barrier"]
                a.extend(st)
    for c in range(4): chunk(c, c == 0, False)
    a(f"s_mov_b32 s{SA_CNT}, 0")
    a.label("k2_aloop")
    for c in range(4, 8): chunk(c, False, False)
    a(f"s_add_u32 s{SA_CNT}, s{SA_CNT}, 1")
    a(f"s_cmp_lt_u32 s{SA_CNT}, 2")
    a("s_cbranch_scc1 k2_aloop")
    a(f"s_load_dwordx2 s[30:31], s[0:1], {KA_WO}")
    X = A_TMP
    a(f"s_mul_i32 s{S_T}, s{S_W}, 81")
    a(f"s_mul_i32 s{S_T2}, s{S_SLOT}, {18*1152}")
    a("s_waitcnt lgkmcnt(0)")
    a("s_mov_b32 s32, s30"); a("s_and_b32 s33, s31, 0xffff"); a(f"s_mov_b32 s34, {576*576*2}"); a("s_mov_b32 s35, 0x20000")
    for r in range(2):
        a(f"v_add_u32 v{X}, {64*r}, v1")
        if r == 1: a(f"v_min_u32 v{X}, 80, v{X}")
        a(f"v_add_u32 v{X}, s{S_T}, v{X}")
        a(f"v_mul_u32_u24 v{X+1}, 3641, v{X}")
        a(f"v_lshrrev_b32 v{X+1}, 16, v{X+1}")
        a(f"v_mul_u32_u24 v{X+2}, 18, v{X+1}")
        a(f"v_sub_u32 v{X}, v{X}, v{X+2}")
        a(f"v_mul_u32_u24 v{X+1}, 1152, v{X+1}")
        a(f"v_lshl_add_u32 v{X}, v{X}, 6, v{X+1}")
        a(f"buffer_load_dword v{X+3}, v{X}, s[32:35], s{S_T2} offen")
    for c in range(12, 16): chunk(c, False, c == 15)
    stamp_at(a, 4)
    a("s_nop 1")
    a.extend(pv_mfmas(1, 1, 1))
    a("s_barrier")
    a("s_nop 15")
    SA_RETRY = 26
    a(f"s_mov_b32 s{SA_RETRY}, 0")
    a.label("k2_afin")
    T = A_TMP
    a("s_mov_b64 s[28:29], 0")
    for b in range(2):
        O = A_O[b]
        L = T + 10 + b
        a(f"v_mov_b32 v{T}, v{O+10}")
        a(f"v_mov_b32 v{L}, v{O+10}")
        a("s_nop 1")
        a(f"v_permlane32_swap_b32 v{L}, v{T}")
        a("s_nop 1")
        a(f"v_mov_b32 v{T}, {float_hex(2.0**120)}")
        a(f"v_cmp_nlt_f32 vcc, v{L}, v{T}")
        a(f"v_rcp_f32 v{L}, v{L}")
        a("s_or_b64 s[28:29], s[28:29], vcc")
        a(f"v_mul_f32 v{L}, {float_hex(INVC)}, v{L}")
        for k in range(10):
            a(f"v_mul_f32 v{O+16+k if False else T+12+k}, v{O+k}, v{L}")
        a(f"v_mul_f32 v{T}, 0, v{T+12}")
        for k in range(1, 10):
            a(f"v_fmac_f32 v{T}, 0, v{T+12+k}")
        a(f"v_mov_b32 v{T+1}, 0x207")
        a(f"v_cmp_class_f32 vcc, v{T}, v{T+1}")
        for k in range(4):
            a(f"v_cvt_pk_bf16_f32 v{A_P[b]+k}, v{T+12+2*k}, v{T+12+2*k+1}")
        a(f"v_cvt_pk_bf16_f32 v{A_P[b]+4}, v{T+20}, v{T+21}")
        a("s_or_b64 s[28:29], s[28:29], vcc")
    if FORCE_SLOW: a("s_mov_b64 s[28:29], -1")
    a(f"s_cmp_eq_u32 s{SA_RETRY}, 0")
    a("s_cselect_b64 s[30:31], s[28:29], 0")
    a("s_cmp_lg_u64 s[30:31], 0")
    a("s_cbranch_scc1 k2_aslow")
    for b in range(2):
        a(f"s_lshl_b32 s{S_T}, s{SA_H}, 6")
        a(f"s_add_u32 s{S_T}, s{S_T}, s{SA_TBQ}")
        a(f"s_lshl_b32 s{S_T}, s{S_T}, 10")
        a(f"s_add_u32 s{S_T}, s{S_T}, {WS_OF + b*1024}")
        a(f"buffer_store_dwordx4 {vr(A_P[b],4)}, v{A_L16}, s[{S_WS}:{S_WS+3}], s{S_T} offen")
        a(f"s_lshr_b32 s{S_T}, s{SA_H}, 3")
        a(f"s_lshl_b32 s{S_T}, s{S_T}, 6")
        a(f"s_add_u32 s{S_T}, s{S_T}, s{SA_TBQ}")
        a(f"s_lshl_b32 s{S_T}, s{S_T}, 10")
        a(f"s_bfe_u32 s{S_T2}, s{SA_H}, {(1<<16)|2}")
        a(f"s_lshl_b32 s{S_T2}, s{S_T2}, 9")
        a(f"s_add_u32 s{S_T}, s{S_T}, s{S_T2}")
        a(f"s_and_b32 s{S_T2}, s{SA_H}, 3")
        a(f"s_lshl_b32 s{S_T2}, s{S_T2}, 2")
        a(f"s_add_u32 s{S_T}, s{S_T}, s{S_T2}")
        a(f"s_add_u32 s{S_T}, s{S_T}, {WS_OX + b*1024}")
        a(f"v_mov_b32 v{T+9}, 0x7ffffff0")
        a("v_cmp_gt_u32 vcc, 32, v1")
        a("s_nop 1")
        a(f"v_cndmask_b32 v{T+9}, v{T+9}, v{A_L16}, vcc")
        a(f"buffer_store_dword v{A_P[b]+4}, v{T+9}, s[{S_WS}:{S_WS+3}], s{S_T} offen")
    a(f"s_cmp_eq_u32 s{SA_RETRY}, 0")
    a("s_cbranch_scc0 k2_anobar")
    a("s_barrier")
    a.label("k2_anobar")
    if STAMP or RT["on"]: a("s_waitcnt vmcnt(0)")
    stamp_at(a, 5)
    stamp_out(a, 6, 6)
    rt_end(a, 2, 6, S_W0)
    a("s_endpgm")
    a.label("k2_aslow")
    a("s_barrier")
    a(f"s_mov_b32 s{SA_RETRY}, 1")
    KB = A_K1[0]
    a("v_lshrrev_b32 v3, 5, v1")
    a(f"v_lshl_add_u32 v11, v3, 15, v{A_L4}")
    a(f"s_mul_i32 s36, s{SA_H}, {9*8192}")
    a(f"s_add_u32 s36, s36, {WS_QKP + 288*8192}")
    a(f"s_mul_i32 s37, s{SA_H}, {128*576}")
    a(f"s_add_u32 s37, s37, {WS_VF}")
    a(f"v_mov_b32 v{A_KX[0]+1}, 0")
    def load_k():
        for j in range(4):
            a(f"s_add_u32 s{S_T2}, s38, {j*8192}")
            a(f"buffer_load_dword v{KB+j}, v11, s[{S_WS}:{S_WS+3}], s{S_T2} offen")
        a(f"s_add_u32 s{S_T2}, s38, {8*8192}")
        a(f"buffer_load_dword v{A_KX[0]}, v{A_L4}, s[{S_WS}:{S_WS+3}], s{S_T2} offen")
    def sqk(b, c):
        S = vr(A_S[b], 16)
        a(f"v_mfma_f32_32x32x8_bf16 {S}, {vr(A_KX[0],2)}, {vr(A_Q2A[b],2)}, {c}")
        a(f"v_mfma_f32_32x32x16_bf16 {S}, {vr(KB,4)}, {vr(A_Q1[b],4)}, {S}")
    M = [T, T + 1]
    a(f"v_mov_b32 v{M[0]}, 0xff800000"); a(f"v_mov_b32 v{M[1]}, 0xff800000")
    a("s_mov_b32 s38, s36"); a("s_mov_b32 s39, 0")
    a.label("k2_slowA")
    load_k()
    a("s_waitcnt vmcnt(0)")
    sqk(0, "0"); sqk(1, "0")
    a("s_nop 15"); a("s_nop 3")
    for b in range(2):
        for k in range(8): a(f"v_max3_f32 v{M[b]}, v{A_S[b]+2*k}, v{A_S[b]+2*k+1}, v{M[b]}")
    a("s_add_u32 s38, s38, 128"); a("s_add_u32 s39, s39, 1"); a("s_cmp_lt_u32 s39, 64"); a("s_cbranch_scc1 k2_slowA")
    for b in range(2):
        a(f"v_mov_b32 v{T+2}, v{M[b]}")
        a("s_nop 1")
        a(f"v_permlane32_swap_b32 v{T+2}, v{M[b]}")
        a("s_nop 1")
        a(f"v_max_f32 v{M[b]}, v{M[b]}, v{T+2}")
        for k in range(16): a(f"v_sub_f32 v{A_NM[b]+k}, 0, v{M[b]}")
        for k in range(16): a(f"v_mov_b32 v{A_O[b]+k}, 0")
    a("v_and_b32 v2, 31, v1")
    a(f"v_mov_b32 v{T+2}, 0x3f803f80")
    a("v_cmp_eq_u32 vcc, 18, v2")
    a("s_nop 1")
    for k in range(8): a(f"v_cndmask_b32 v{A_V[0]+k}, 0, v{T+2}, vcc")
    a("v_mul_u32_u24 v3, 18, v3")
    a("v_add_u32 v3, v3, v2")
    a(f"v_lshlrev_b32 v{T+3}, 4, v3")
    a("v_cmp_gt_u32 vcc, 18, v2")
    a("s_nop 1")
    a("s_mov_b64 s[40:41], vcc")
    a("s_mov_b32 s38, s36"); a("s_mov_b32 s39, 0")
    a.label("k2_slowB")
    load_k()
    a("s_mov_b64 exec, s[40:41]")
    a(f"buffer_load_dwordx4 {vr(A_V[0],4)}, v{T+3}, s[{S_WS}:{S_WS+3}], s37 offen")
    a(f"buffer_load_dwordx4 {vr(A_V[0]+4,4)}, v{T+3}, s[{S_WS}:{S_WS+3}], s37 offen offset:576")
    a("s_mov_b64 exec, -1")
    a("s_waitcnt vmcnt(0)")
    sqk(0, vr(A_NM[0], 16)); sqk(1, vr(A_NM[1], 16))
    a("s_nop 15"); a("s_nop 3")
    for b in range(2):
        S, P = A_S[b], A_P[b]
        for k in range(16): a(f"v_exp_f32 v{S+k}, v{S+k}")
        a("s_nop 0")
        for k in range(8): a(f"v_cvt_pk_bf16_f32 v{P+k}, v{S+2*k}, v{S+2*k+1}")
    a("s_nop 1")
    for b in range(2): a.extend(pv_mfmas(b, 0, b))
    a("s_add_u32 s38, s38, 128"); a("s_add_u32 s37, s37, 1152"); a("s_add_u32 s39, s39, 1"); a("s_cmp_lt_u32 s39, 64"); a("s_cbranch_scc1 k2_slowB")
    a("s_nop 15"); a("s_nop 3")
    a("s_branch k2_afin")

G_ACC = 64
G_RING = 208
G_H = 224
G_WP = 2
G_KP, G_VP, G_TR, G_TRC, G_L16, G_XP = 11, 12, 13, 14, 15, 16
SG_TBL, SG_KH, SG_S, SG_NH = 24, 25, 26, 27
SG_WOFF, SG_HOFF, SG_KOFF, SG_XOFF, SG_VOFF = 28, 29, 30, 31, 32
SG_WST, SG_KVS, SG_CUR, SG_CNT, SG_SO = 33, 34, 35, 36, 37
SG_VMASK = 38
SG_DV, SG_DX = 42, 43
SG_HEAD, SG_WLDS, SG_TB, SG_W1024, SG_WROT, SG_KVROT = 44, 45, 46, 47, 48, 49

def gen_gemm(a):
    a(f"s_sub_u32 s{S_W}, s{S_W}, 4")
    if 'prioG' in EXP: a("s_setprio 2")
    a(f"s_lshl_b32 s{S_T}, s{S_XCD}, 2")
    a(f"s_and_b32 s{S_T2}, s{S_SLOT}, 3")
    a(f"s_add_u32 s{SG_HEAD}, s{S_T}, s{S_T2}")
    a("v_and_b32 v17, 3, v1")
    a("v_lshrrev_b32 v18, 2, v1")
    a("v_lshlrev_b32 v18, 2, v18")
    a(f"v_lshl_add_u32 v{G_KP}, v17, 13, v18")
    a(f"v_lshl_add_u32 v{G_XP}, v17, 7, v18")
    a("v_and_b32 v17, 31, v1")
    a("v_lshrrev_b32 v18, 5, v1")
    a("v_mul_u32_u24 v18, 18, v18")
    a("v_add_u32 v18, v18, v17")
    a(f"v_lshlrev_b32 v{G_VP}, 4, v18")
    a("v_cmp_gt_u32 vcc, 18, v17")
    a(f"s_mul_i32 s{SG_KOFF}, s{SG_HEAD}, {9*8192}")
    a(f"s_add_u32 s{SG_KOFF}, s{SG_KOFF}, {WS_QKP + 288*8192}")
    a(f"s_and_b32 s{S_T}, s{S_W}, 1")
    a(f"s_lshl_b32 s{S_T2}, s{S_T}, 6")
    a(f"s_add_u32 s{SG_XOFF}, s{SG_KOFF}, s{S_T2}")
    a(f"s_add_u32 s{SG_XOFF}, s{SG_XOFF}, {8*8192}")
    a(f"s_lshl_b32 s{S_T2}, s{S_W}, 7")
    a(f"s_add_u32 s{SG_KOFF}, s{SG_KOFF}, s{S_T2}")
    a(f"s_mov_b64 s[{SG_VMASK}:{SG_VMASK+1}], vcc")
    a(f"s_lshl_b32 s{SG_VOFF}, s{SG_HEAD}, 7")
    a(f"s_lshl_b32 s{S_T2}, s{S_W}, 1")
    a(f"s_add_u32 s{SG_VOFF}, s{SG_VOFF}, s{S_T2}")
    a(f"s_mul_i32 s{SG_VOFF}, s{SG_VOFF}, 576")
    a(f"s_add_u32 s{SG_VOFF}, s{SG_VOFF}, {WS_VF}")
    a(f"s_lshl_b32 s{SG_W1024}, s{S_W}, 10")
    a(f"s_add_u32 s{SG_DV}, s{SG_W1024}, {KV_V}")
    a(f"s_lshl_b32 s{S_T}, s{S_T}, 8")
    a(f"s_add_u32 s{SG_DX}, s{S_T}, {KV_X}")
    a(f"s_sub_u32 s{SG_DX}, s{SG_DX}, s{SG_W1024}")
    a(f"s_mov_b32 s{SG_WROT}, 0"); a(f"s_mov_b32 s{SG_KVROT}, 0"); a(f"s_mov_b32 s{SG_CUR}, 0")
    def next_rot(sreg, step, n):
        return [f"s_add_u32 s{sreg}, s{sreg}, {step}", f"s_cmp_eq_u32 s{sreg}, {n*step}", f"s_cselect_b32 s{sreg}, 0, s{sreg}"]
    def issue_kv():
        out = [[f"s_add_u32 s{SG_KVS}, s{SG_KVROT}, s{SG_W1024}", f"s_add_u32 s{SG_KVS}, s{SG_KVS}, {KV0 + KV_K}"]]
        for g in range(4):
            h2, half = g // 2, g % 2
            out.append([f"s_add_u32 m0, s{SG_KVS}, {g*256}", f"s_add_u32 s{SG_SO}, s{SG_KOFF}, {h2*4*8192 + half*64}",
                        f"buffer_load_dword v{G_KP}, s[{S_WS}:{S_WS+3}], s{SG_SO} offen lds"])
        out.append([f"s_add_u32 m0, s{SG_KVS}, s{SG_DX}", "s_nop 0",
                    f"buffer_load_dword v{G_XP}, s[{S_WS}:{S_WS+3}], s{SG_XOFF} offen lds"])
        out.append([f"s_add_u32 m0, s{SG_KVS}, s{SG_DV}", f"s_mov_b64 exec, s[{SG_VMASK}:{SG_VMASK+1}]",
                    f"buffer_load_dwordx4 v{G_VP}, s[{S_WS}:{S_WS+3}], s{SG_VOFF} offen lds",
                    f"s_add_u32 m0, m0, 1024", f"s_add_u32 s{SG_SO}, s{SG_VOFF}, 576",
                    f"buffer_load_dwordx4 v{G_VP}, s[{S_WS}:{S_WS+3}], s{SG_SO} offen lds",
                    "s_mov_b64 exec, -1"])
        out.append([f"s_add_u32 s{SG_KOFF}, s{SG_KOFF}, 512", f"s_add_u32 s{SG_XOFF}, s{SG_XOFF}, 512",
                    f"s_add_u32 s{SG_VOFF}, s{SG_VOFF}, {8*576}"] + next_rot(SG_KVROT, KVST, NKV))
        return out
    flat = lambda L: [x for g in L for x in g]
    a.extend(flat(issue_kv()))
    a(f"s_and_b32 s{SG_TBL}, s{S_W}, 1")
    a(f"s_lshr_b32 s{SG_KH}, s{S_W}, 1")
    a(f"s_lshr_b32 s{SG_S}, s{S_XCD}, 1")
    a(f"s_and_b32 s{SG_NH}, s{S_XCD}, 1")
    a(f"v_lshlrev_b32 v{G_L16}, 4, v1")
    a(f"s_lshl_b32 s{SG_HOFF}, s{S_SLOT}, 1")
    a(f"s_add_u32 s{SG_HOFF}, s{SG_HOFF}, s{SG_TBL}")
    a(f"s_mov_b32 s{SG_TB}, s{SG_HOFF}")
    a(f"s_mul_i32 s{SG_HOFF}, s{SG_HOFF}, 288")
    a(f"s_mul_i32 s{S_T}, s{SG_S}, 72")
    a(f"s_add_u32 s{SG_HOFF}, s{SG_HOFF}, s{S_T}")
    a(f"s_mul_i32 s{S_T}, s{SG_KH}, 36")
    a(f"s_add_u32 s{SG_HOFF}, s{SG_HOFF}, s{S_T}")
    a(f"s_lshl_b32 s{SG_HOFF}, s{SG_HOFF}, 10")
    a(f"s_add_u32 s{SG_HOFF}, s{SG_HOFF}, {WS_HF}")
    def issue_h(slot):
        return [[f"buffer_load_dwordx4 {vr(G_H + 8*slot, 4)}, v{G_L16}, s[{S_WS}:{S_WS+3}], s{SG_HOFF} offen",
                 f"buffer_load_dwordx4 {vr(G_H + 8*slot + 4, 4)}, v{G_L16}, s[{S_WS}:{S_WS+3}], s{SG_HOFF} offen offset:1024",
                 f"s_add_u32 s{SG_HOFF}, s{SG_HOFF}, 2048"]]
    a.extend(flat(issue_h(0)))
    for i in range(9):
        a(f"v_add_u32 v17, {64*i}, v1")
        a("v_mul_u32_u24 v18, 1821, v17")
        a("v_lshrrev_b32 v18, 16, v18")
        a("v_mul_u32_u24 v19, 36, v18")
        a("v_sub_u32 v17, v17, v19")
        a("v_mul_u32_u24 v18, 1152, v18")
        a(f"v_lshl_add_u32 v{G_WP+i}, v17, 4, v18")
        if i % 4: a(f"v_subrev_u32 v{G_WP+i}, {(i%4)*1024}, v{G_WP+i}")
    a(f"s_mul_i32 s{SG_WOFF}, s{SG_S}, 1152")
    a(f"s_mul_i32 s{S_T}, s{SG_KH}, 576")
    a(f"s_add_u32 s{SG_WOFF}, s{SG_WOFF}, s{S_T}")
    a(f"s_lshl_b32 s{S_T}, s{SG_TBL}, 4")
    a(f"s_add_u32 s{SG_WOFF}, s{SG_WOFF}, s{S_T}")
    a(f"s_mul_i32 s{SG_WOFF}, s{SG_WOFF}, 1152")
    a(f"s_mul_i32 s{S_T}, s{SG_NH}, 576")
    a(f"s_add_u32 s{SG_WOFF}, s{SG_WOFF}, s{S_T}")
    a(f"s_mul_i32 s{SG_WLDS}, s{SG_KH}, 18432")
    a(f"s_mul_i32 s{S_T}, s{SG_TBL}, 9216")
    a(f"s_add_u32 s{SG_WLDS}, s{SG_WLDS}, s{S_T}")
    def issue_w():
        out = [[f"s_add_u32 m0, s{SG_WROT}, s{SG_WLDS}"]]
        for i in range(9):
            g = []
            if i % 4 == 0 and i > 0: g += ["s_add_u32 m0, m0, 4096", "s_nop 0"]
            if i == 0: g.append("s_nop 0")
            g.append(f"buffer_load_dwordx4 v{G_WP+i}, s[{S_WD}:{S_WD+3}], s{SG_WOFF} offen offset:{(i%4)*1024} lds")
            out.append(g)
        out.append([f"s_add_u32 s{SG_WOFF}, s{SG_WOFF}, {32*1152}"] + next_rot(SG_WROT, WST, NWST))
        return out
    a.extend(flat(issue_w()))
    a.extend(flat(issue_kv())); a.extend(flat(issue_h(1))); a.extend(flat(issue_w()))
    a("v_and_b32 v17, 15, v1")
    a("v_lshrrev_b32 v18, 2, v17")
    a("v_and_b32 v17, 3, v17")
    a("v_lshlrev_b32 v17, 3, v17")
    a("v_lshrrev_b32 v19, 5, v1")
    a("v_lshl_add_u32 v18, v19, 2, v18")
    a("v_mul_u32_u24 v18, 576, v18")
    a("v_bfe_u32 v19, v1, 4, 1")
    a("v_lshl_add_u32 v17, v19, 5, v17")
    a(f"v_add_u32 v{G_TR}, v18, v17")
    a(f"s_mul_i32 s{S_T}, s{SG_KH}, 18432")
    a(f"v_add_u32 v{G_TR}, s{S_T}, v{G_TR}")
    a("s_waitcnt vmcnt(18)")
    stamp_at(a, 1)
    a("s_barrier")
    stamp_at(a, 2)
    def phase(p, do_w, do_kv, hslot, first=False):
        groups = []
        if do_kv: groups += issue_kv()
        if do_w and 'nogl' not in EXP: groups += issue_h((hslot + 2) % 3) + issue_w()
        a(f"v_add_u32 v{G_TRC}, s{SG_CUR}, v{G_TR}")
        if 'nogm' in EXP:
            for g in groups: a.extend(g)
            a.extend(next_rot(SG_CUR, WST, NWST)); return
        seq = [(ks, nt) for ks in range(2) for nt in range(9)]
        def rd(i):
            ks, nt = seq[i]
            r = G_RING + 4*(i % 4)
            off = ks*9216 + nt*64
            if 'gnord' in EXP: return []
            return [f"ds_read_b64_tr_b16 {vr(r,2)}, v{G_TRC} offset:{off}", f"ds_read_b64_tr_b16 {vr(r+2,2)}, v{G_TRC} offset:{off+4608}"]
        for i in range(3): a.extend(rd(i))
        gi = 0
        for i in range(18):
            ks, nt = seq[i]
            n_out = min(2, 17 - i)
            a(f"s_waitcnt lgkmcnt({2*n_out})")
            r = G_RING + 4*(i % 4)
            acc = vr(G_ACC + 16*nt, 16)
            c = "0" if (first and ks == 0) else acc
            if 'gnomf' not in EXP: a(f"v_mfma_f32_32x32x16_bf16 {acc}, {vr(r,4)}, {vr(G_H + 8*hslot + 4*ks, 4)}, {c}")
            if 'gsleep' in EXP: a("s_sleep 1")
            if i + 3 < 18: a.extend(rd(i + 3))
            tgt = min(len(groups), (len(groups) * (i + 1) + 9) // 10)
            while gi < tgt:
                a.extend(groups[gi]); gi += 1
        a.extend(next_rot(SG_CUR, WST, NWST))
    nvm = lambda w, kv: (11 if (w and 'nogl' not in EXP) else 0) + (7 if kv else 0)
    def ph(p):
        w, kv = p <= 15, p <= 13
        phase(p, w, kv, p % 3, first=(p == 0))
        if p < 17:
            a(f"s_waitcnt vmcnt({nvm(w, kv)})")
            a("s_barrier")
    ph(0)
    a(f"s_mov_b32 s{SG_CNT}, 0")
    a.label("k2_gloop")
    for q in range(3): ph(1 + q)
    a(f"s_add_u32 s{SG_CNT}, s{SG_CNT}, 1")
    a(f"s_cmp_lt_u32 s{SG_CNT}, 4")
    a("s_cbranch_scc1 k2_gloop")
    for p in range(13, 18): ph(p)
    stamp_at(a, 4)
    a("s_nop 15")
    a(f"s_mul_i32 s{S_T}, s{SG_TBL}, 36864")
    a(f"v_add_u32 v17, s{S_T}, v{G_L16}")
    a(f"s_lshl_b32 s{S_T}, s{SG_S}, 6")
    a(f"s_add_u32 s{S_T}, s{S_T}, s{SG_TB}")
    a(f"s_mul_i32 s{S_T}, s{S_T}, 18")
    a(f"s_mul_i32 s{S_T2}, s{SG_NH}, 9")
    a(f"s_add_u32 s{S_T}, s{S_T}, s{S_T2}")
    a(f"s_lshl_b32 s{S_T}, s{S_T}, 11")
    a(f"s_add_u32 s{S_T}, s{S_T}, {WS_P}")
    a(f"s_cmp_eq_u32 s{SG_KH}, 0")
    a("s_cbranch_scc0 k2_gred1")
    def red(own, other):
        for nt in other:
            for q in range(4):
                a(f"ds_write_b128 v17, {vr(G_ACC + 16*nt + 4*q, 4)} offset:{(4*nt+q)*1024}")
        a("s_waitcnt vmcnt(0) lgkmcnt(0)")
        a("s_barrier")
        if own[0] > 0: a(f"s_add_u32 s{S_T}, s{S_T}, {own[0]*2048}")
        def rds(nt):
            base = G_RING if (nt % 2 == 0) else G_H
            for q in range(4):
                a(f"ds_read_b128 {vr(base + 4*q, 4)}, v17 offset:{(4*nt+q)*1024}")
        rds(own[0])
        for idx, nt in enumerate(own):
            base = G_RING if (nt % 2 == 0) else G_H
            last = idx + 1 == len(own)
            if not last: rds(own[idx + 1])
            a(f"s_waitcnt lgkmcnt({0 if last else 4})")
            for e in range(16):
                a(f"v_add_f32 v{G_ACC+16*nt+e}, v{G_ACC+16*nt+e}, v{base+e}")
            P = 32 + 8 * (nt % 2)
            for k in range(8):
                a(f"v_cvt_pk_bf16_f32 v{P+k}, v{G_ACC+16*nt+2*k}, v{G_ACC+16*nt+2*k+1}")
            a(f"buffer_store_dwordx4 {vr(P,4)}, v{G_L16}, s[{S_WS}:{S_WS+3}], s{S_T} offen")
            a(f"buffer_store_dwordx4 {vr(P+4,4)}, v{G_L16}, s[{S_WS}:{S_WS+3}], s{S_T} offen offset:1024")
            if not last: a(f"s_add_u32 s{S_T}, s{S_T}, 2048")
        if STAMP or RT["on"]: a("s_waitcnt vmcnt(0)")
        stamp_at(a, 5)
        stamp_out(a, 6, 6)
        rt_end(a, 2, 6, S_W0)
        a("s_endpgm")
    red([0, 1, 2, 3, 4], [5, 6, 7, 8])
    a.label("k2_gred1")
    red([5, 6, 7, 8], [0, 1, 2, 3, 4])

def gen_k2(stampit=False, exp=()):
    global STAMP, EXP, FORCE_SLOW, CMARGIN
    FORCE_SLOW = 'forceslow' in exp
    if 'margin0' in exp: CMARGIN = -60.0
    STAMP = stampit
    EXP = set(exp)
    a = Asm()
    name = "k2_attn_kernel"
    a.lines.append(kernel_header(name).rstrip("\n"))
    a("s_cmp_ge_u32 s2, 256")
    a("s_cbranch_scc1 k2_end")
    stamp_at(a, 0)
    rt_begin(a, 2)
    a(f"s_load_dwordx2 s[4:5], s[0:1], {KA_WD}")
    a(f"s_load_dwordx2 s[6:7], s[0:1], {KA_WS}")
    a("v_and_b32 v1, 63, v0")
    a("v_lshrrev_b32 v2, 6, v0")
    a(f"s_and_b32 s{S_XCD}, s2, 7")
    a(f"v_readfirstlane_b32 s{S_W}, v2")
    a(f"s_lshr_b32 s{S_SLOT}, s2, 3")
    a("s_waitcnt lgkmcnt(0)")
    srd(a, S_WS, 6, WS_END)
    srd(a, S_WD, 4, 4608*576*2)
    a(f"s_mov_b32 s{S_W0}, s{S_W}")
    a(f"s_cmp_ge_u32 s{S_W}, 4")
    a("s_cbranch_scc1 k2_gemm")
    gen_attn(a)
    a.label("k2_gemm")
    gen_gemm(a)
    a.label("k2_end")
    a("s_endpgm")
    return a.text() + kernel_desc(name, 256, 256, 100), name
```

```python
from common import *
PREFETCH = True
PF128 = False
K0SLEEP = 0
def gen_k0():
    a = Asm()
    name = "k0_ln_kernel"
    a.lines.append(kernel_header(name).rstrip("\n"))
    a("s_cmp_ge_u32 s2, 256")
    a("s_cbranch_scc1 k0_end")
    rt_begin(a, 0)
    a(f"s_load_dwordx2 s[4:5], s[0:1], {KA_X}")
    a(f"s_load_dwordx2 s[6:7], s[0:1], {KA_WS}")
    if PREFETCH:
        a(f"s_load_dwordx2 s[24:25], s[0:1], {KA_WQKV}")
        a(f"s_load_dwordx4 s[28:31], s[0:1], {KA_WG}")
    a("v_lshrrev_b32 v1, 5, v0")
    a("v_and_b32 v2, 31, v0")
    a("s_lshl_b32 s3, s2, 3")
    a("v_add_u32 v3, s3, v1")
    a("v_mul_u32_u24 v4, 1152, v3")
    a("v_lshl_add_u32 v4, v2, 4, v4")
    a("v_add_u32 v5, 1024, v4")
    a("v_mov_b32 v6, 0x7ffffff0")
    a("v_cmp_gt_u32 vcc, 8, v2")
    a("s_nop 1")
    a("v_cndmask_b32 v5, v6, v5, vcc")
    a("s_waitcnt lgkmcnt(0)")
    srd(a, 8, 4, S_TOK*D*2)
    srd(a, 12, 6, WS_END)
    a("buffer_load_dwordx4 v[8:11], v4, s[8:11], 0 offen")
    a("buffer_load_dwordx4 v[12:15], v4, s[8:11], 0 offen offset:512")
    a("buffer_load_dwordx4 v[16:19], v5, s[8:11], 0 offen")
    if PREFETCH:
        srd(a, 32, 24, 576*1728*2); srd(a, 36, 28, 576*4608*2); srd(a, 40, 30, 576*4608*2)
        a("s_and_b32 s16, s2, 7")
        a("s_lshr_b32 s17, s2, 3")
        a("s_mul_i32 s18, s17, 18")
        a("s_mul_i32 s19, s18, 9216")
        a("s_mul_i32 s20, s16, 1152")
        a("s_add_u32 s19, s19, s20")
        if PF128:
            a("v_mul_u32_u24 v53, 7282, v0")
            a("v_lshrrev_b32 v53, 16, v53")
            a("v_mul_u32_u24 v54, 9, v53")
            a("v_sub_u32 v54, v0, v54")
            a("v_mul_u32_u24 v53, 9216, v53")
            a("v_lshl_add_u32 v53, v54, 7, v53")
            a("v_cmp_gt_u32 vcc, 162, v0")
            a("s_nop 1")
            a("v_cndmask_b32 v53, v6, v53, vcc")
            a("buffer_load_dword v55, v53, s[36:39], s19 offen")
            a("buffer_load_dword v56, v53, s[40:43], s19 offen")
        for r in range(0 if PF128 else 2):
            a(f"v_add_u32 v52, {256*r}, v0")
            a("v_mul_u32_u24 v53, 3641, v52")
            a("v_lshrrev_b32 v53, 16, v53")
            a("v_mul_u32_u24 v54, 18, v53")
            a("v_sub_u32 v54, v52, v54")
            a("v_mul_u32_u24 v53, 9216, v53")
            a("v_lshl_add_u32 v53, v54, 6, v53")
            if r == 1:
                a("v_cmp_gt_u32 vcc, 324, v52")
                a("s_nop 1")
                a("v_cndmask_b32 v53, v6, v53, vcc")
            a(f"buffer_load_dword v{55+2*r}, v53, s[36:39], s19 offen")
            a(f"buffer_load_dword v{56+2*r}, v53, s[40:43], s19 offen")
        a("s_lshl_b32 s20, s16, 9")
        a("s_cmp_eq_u32 s16, 6")
        a("s_cselect_b32 s20, 2944, s20")
        a("s_cmp_eq_u32 s16, 7")
        a("s_cselect_b32 s20, 3200, s20")
        a("s_mul_i32 s19, s18, 3456")
        a("s_add_u32 s19, s19, s20")
        a("v_lshrrev_b32 v53, 3, v0")
        a("v_and_b32 v54, 7, v0")
        a("v_mul_u32_u24 v53, 3456, v53")
        a("v_lshl_add_u32 v53, v54, 6, v53")
        a("v_cmp_gt_u32 vcc, 144, v0")
        a("s_nop 1")
        a("v_cndmask_b32 v53, v6, v53, vcc")
        a("buffer_load_dword v59, v53, s[32:35], s19 offen")
        a("v_cmp_gt_u32 vcc, 8, v2")
    if CODEPF["on"]:
        a("v_and_b32 v60, 63, v0")
        a.extend(code_prefetch(a, "k1_gemm1_kernel", "k3_code_end", 44, 61, 62, 60, uid="k0"))
    a("v_lshrrev_b32 v44, 4, v3")
    a("v_mul_u32_u24 v44, 18, v44")
    a("v_lshrrev_b32 v45, 2, v2")
    a("v_add_u32 v44, v44, v45")
    a("v_lshlrev_b32 v44, 6, v44")
    a("v_and_b32 v45, 3, v2")
    a("v_lshlrev_b32 v45, 4, v45")
    a("v_and_b32 v46, 15, v3")
    a("v_add3_u32 v44, v44, v45, v46")
    a("v_lshlrev_b32 v44, 4, v44")
    a("v_add_u32 v45, 8192, v44")
    a("v_add_u32 v46, 16384, v44")
    a("v_cndmask_b32 v46, v6, v46, vcc")
    a(f"s_waitcnt vmcnt({((3 if PF128 else 5) if PREFETCH else 0) + (1 if CODEPF['on'] else 0)})")
    for q in range(12):
        a(f"v_lshlrev_b32 v{20+2*q}, 16, v{8+q}")
        a(f"v_and_b32 v{21+2*q}, 0xffff0000, v{8+q}")
    a("v_add_f32 v47, v20, v21")
    for q in range(2, 24):
        a(f"v_add_f32 v47, v47, v{20+q}")
    def reduce32(reg):
        for x in (16, 8, 4, 2, 1):
            a(f"ds_swizzle_b32 v48, v{reg} offset:{(x<<10)|0x1f}")
            a("s_waitcnt lgkmcnt(0)")
            a(f"v_add_f32 v{reg}, v{reg}, v48")
    reduce32(47)
    a(f"v_mul_f32 v47, {float_hex(1.0/576)}, v47")
    for q in range(24):
        a(f"v_sub_f32 v{20+q}, v{20+q}, v47")
    for q in range(16, 24):
        a(f"v_cndmask_b32 v{20+q}, 0, v{20+q}, vcc")
    a("v_mul_f32 v49, v20, v20")
    for q in range(1, 24):
        a(f"v_fmac_f32 v49, v{20+q}, v{20+q}")
    reduce32(49)
    a(f"v_mov_b32 v50, {float_hex(1e-5)}")
    a(f"v_fmac_f32 v50, {float_hex(1.0/576)}, v49")
    a("v_rsq_f32 v50, v50")
    a("s_nop 0")
    a(f"v_mul_f32 v50, {float_hex(1.4426950408889634)}, v50")
    for q in range(24):
        a(f"v_mul_f32 v{20+q}, v{20+q}, v50")
    for q in range(12):
        a(f"v_cvt_pk_bf16_f32 v{8+q}, v{20+2*q}, v{21+2*q}")
    a("buffer_store_dwordx4 v[8:11], v44, s[12:15], 0 offen")
    a("buffer_store_dwordx4 v[12:15], v45, s[12:15], 0 offen")
    a("buffer_store_dwordx4 v[16:19], v46, s[12:15], 0 offen")
    a("s_waitcnt vmcnt(0)")
    if RT["on"]:
        a("v_lshrrev_b32 v1, 6, v0"); a("s_nop 0"); a("v_readfirstlane_b32 s20, v1")
    rt_end(a, 0, 6, 20)
    for _ in range(K0SLEEP): a("s_sleep 16")
    a.label("k0_end")
    a("s_endpgm")
    return a.text() + kernel_desc(name, 64, 64, 100 if RT['on'] else 52), name

import struct
def float_hex(x):
    return "0x%08x" % struct.unpack("<I", struct.pack("<f", x))[0]
```

```python
from common import *
from k0 import float_hex

LOG2E = 1.4426950408889634
QSCALE2 = (18 ** -0.5) / LOG2E
STG = 12288
REG = 6 * STG
K1_LDS = 2 * REG
STAMP = False
EPI_BUDGET = 560
PREFETCH_WD = True

V_LANE = 1
V_DF = 2
V_DQA, V_DQB = 3, 4
V_TQ = 5
V_TF0, V_TF1 = 9, 10
V_CUR, V_NXT = 11, 12
V_HP = 13
V_QP = 14
V_L16 = 8 + 8
RING = 16
NRING = 6
ACC = [40, 72, 104, 136, 168]
TMP = 200
XV = 224
S_WQ, S_WF, S_WS = 8, 12, 16
S_W, S_G, S_MT, S_T0, S_T1 = 20, 21, 22, 23, 24
S_SOFF, S_TMP, S_TMP2, S_TMP3 = 25, 26, 27, 28
S_HOFF, S_HOFF2 = 29, 30
S_COL = 31
S_FROW = 32
S_FLDS = 33
S_QROW = 34
S_QLDS = 35
S_SCALE = 36
S_QKOFF = 37
S_TB = 38
S_XOFF = 39
S_LOOP = 40
S_STEP = 41
S_REGC = 42
S_DREG = 43
S_TAB = 48
S_HLAST = 44
S_D4 = 45
STB = 66

def stamp_at(a, i):
    if STAMP: a(f"s_memtime s[{STB+2*i}:{STB+1+2*i}]")
def stamp_out(a, n):
    if not STAMP: return
    a("s_waitcnt lgkmcnt(0)")
    a("s_lshl_b32 s4, s2, 2")
    a(f"s_add_u32 s4, s4, s{S_W}")
    a("s_lshl_b32 s4, s4, 6")
    a(f"s_add_u32 s4, s4, {WS_END}")
    a("v_mov_b32 v12, s4")
    for i in range(n):
        a(f"v_mov_b32 v13, s{STB+2*i}")
        a(f"global_store_dword v12, v13, s[46:47] offset:{4*i}")

def xfrag(T, s):
    idx = T * 18 + s
    if idx < 64: return ar(4 * idx, 4)
    return vr(XV + 4 * (idx - 64), 4)

def accr(aset, a, T): return aset + 16 * a + 4 * T

def mfma(kind, aset, a, T, s, ring_idx):
    w = vr(RING + 4 * (ring_idx % NRING), 4)
    x = xfrag(T, s)
    d = vr(accr(aset, a, T), 4)
    c = "0" if s == 0 else d
    if kind == "v": return f"v_mfma_f32_16x16x32_bf16 {d}, {x}, {w}, {c}"
    return f"v_mfma_f32_16x16x32_bf16 {d}, {w}, {x}, {c}"

def rd_ffn(ring_idx, base_reg, a, s):
    r = RING + 4 * (ring_idx % NRING)
    j, ss = s // 3, s % 3
    off = (j % 3) * STG + a * 6144 + ss * 32 * 64
    return [f"ds_read_b64_tr_b16 {vr(r,2)}, v{base_reg} offset:{off}",
            f"ds_read_b64_tr_b16 {vr(r+2,2)}, v{base_reg} offset:{off + 256}"]
def rd_qkv(ring_idx, z, s):
    r = RING + 4 * (ring_idx % NRING)
    j, ss = s // 3, s % 3
    off = (j % 3) * STG + ss * 32 * 128
    return [f"ds_read_b64_tr_b16 {vr(r,2)}, v{V_TQ+z} offset:{off}",
            f"ds_read_b64_tr_b16 {vr(r+2,2)}, v{V_TQ+z} offset:{off + 512}"]

def cost(ins):
    op = ins.split()[0]
    if op in ("v_exp_f32", "v_rcp_f32", "v_exp_f32_e64", "v_rsq_f32"): return 8
    return 4

def dma_ffn_stage(j, region, pair, vpat=None):
    vpat = V_DF if pair % 2 == 0 else V_DF2
    out = [[f"s_add_u32 m0, s{S_FLDS}, {region + j*STG}"]]
    for i in range(3):
        out.append([f"buffer_load_dwordx4 v{vpat}, s[{S_WF}:{S_WF+3}], s{S_TAB + 3*j + i} offen offset:{1024*i} lds ; tag=p{pair}b{j}"])
    return out
def dma_qkv_stage(j):
    out = []
    for i in range(3):
        pat = V_DQA if i % 2 == 0 else V_DQB
        out.append([f"s_add_u32 m0, s{S_QLDS}, {j*STG + i*1024}",
                    f"s_add_u32 s{S_SOFF}, s{S_QROW}, {(96*j + 8*i) * 3456}",
                    f"buffer_load_dwordx4 v{pat}, s[{S_WQ}:{S_WQ+3}], s{S_SOFF} offen lds"])
    return out
def xload_stage(j):
    out = []
    for T in range(4):
        for ss in range(3):
            g = []
            if ss == 0: g.append(f"s_add_u32 s{S_TMP3}, s{S_XOFF}, {(T * 18 + 3*j) * 1024}")
            g.append(f"buffer_load_dwordx4 {xfrag(T, 3*j+ss)}, v{V_L16R}, s[{S_WS}:{S_WS+3}], s{S_TMP3} offen offset:{ss*1024}")
            out.append(g)
    return out
V_L16R = 15
V_TF8 = 14
V_DF2 = 0
NPRE = 1


def epi_ffn(aset, last=False):
    out = []
    if last: out.append(f"s_mov_b32 s{S_HOFF}, s{S_HLAST}")
    for half in range(2):
        Ts = (2 * half, 2 * half + 1)
        t = TMP + 8 * half
        regs = [(accr(aset, 0, T) + i, accr(aset, 1, T) + i) for T in Ts for i in range(4)]
        for k, (g, u) in enumerate(regs): out.append(f"v_exp_f32 v{t+k}, -v{g}")
        for k, (g, u) in enumerate(regs): out.append(f"v_mul_f32 v{g}, v{g}, v{u}")
        for k, (g, u) in enumerate(regs): out.append(f"v_add_f32 v{t+k}, 1.0, v{t+k}")
        for k, (g, u) in enumerate(regs): out.append(f"v_rcp_f32 v{t+k}, v{t+k}")
        for k, (g, u) in enumerate(regs): out.append(f"v_mul_f32 v{g}, v{g}, v{t+k}")
        p = TMP + 16 + 4 * half
        for q, T in enumerate(Ts):
            g = accr(aset, 0, T)
            out.append(f"v_cvt_pk_bf16_f32 v{p+2*q}, v{g}, v{g+1}")
            out.append(f"v_cvt_pk_bf16_f32 v{p+2*q+1}, v{g+2}, v{g+3}")
        so = S_HOFF if half == 0 else S_HOFF2
        if half == 1: out.append(f"s_add_u32 s{S_HOFF2}, s{S_HOFF}, {288*1024}")
        for q, T in enumerate(Ts):
            out.append(f"buffer_store_dwordx2 {vr(p+2*q,2)}, v{V_HP}, s[{S_WS}:{S_WS+3}], s{so} offen offset:{q*256}")
    out.append(f"s_add_u32 s{S_HOFF}, s{S_HOFF}, 1024")
    return out

def epi_qk(aset):
    out = []
    for a_ in range(2):
        for T in range(4):
            R = accr(aset, a_, T)
            for i in range(4): out.append(f"v_mul_f32 v{R+i}, s{S_SCALE}, v{R+i}")
        for T in range(4):
            R = accr(aset, a_, T)
            t = TMP + 8 * a_ + 2 * T
            out.append(f"v_cvt_pk_bf16_f32 v{t}, v{R}, v{R+1}")
            out.append(f"v_cvt_pk_bf16_f32 v{t+1}, v{R+2}, v{R+3}")
        for p in range(2):
            out.append(f"s_add_u32 s{S_TMP2}, s{S_QKOFF}, {(8*a_ + p) * 8192}")
            for T in range(4):
                out.append(f"buffer_store_dword v{TMP + 8*a_ + 2*T + p}, v{V_QP}, s[{S_WS}:{S_WS+3}], s{S_TMP2} offen offset:{64*T}")
    out.append(f"s_add_u32 s{S_QKOFF}, s{S_QKOFF}, {16*8192}")
    return out

def epi_v(aset, pats):
    out = []
    for a_ in range(2):
        for T in range(4):
            R = accr(aset, a_, T)
            t = TMP + 8 * a_ + 2 * T
            out.append(f"v_cvt_pk_bf16_f32 v{t}, v{R}, v{R+1}")
            out.append(f"v_cvt_pk_bf16_f32 v{t+1}, v{R+2}, v{R+3}")
        for T in range(4):
            out.append(f"buffer_store_dwordx2 {vr(TMP + 8*a_ + 2*T, 2)}, v{pats[a_]}, s[{S_WS}:{S_WS+3}], s{S_QKOFF} offen offset:{T*576}")
    return out

def fix_m0(a):
    out = []
    for l in a.lines:
        if out and " lds" in l and l.startswith("buffer_load") and " m0," in out[-1]:
            out.append("s_nop 0")
        out.append(l)
    a.lines = out

class VM:
    def __init__(self): self.n = 0; self.tags = {}
    def issue(self, tag=None):
        self.n += 1
        if tag is not None: self.tags[tag] = self.n
    def wait(self, tag):
        k = self.n - self.tags[tag]
        return f"s_waitcnt vmcnt({min(k, 63)})"

def schedule(mf, fixed, queue, lo=0, hi=None, post=None):
    n = len(mf)
    hi = n if hi is None else hi
    flat = []
    for it in queue:
        if isinstance(it, str): flat.append(it)
        else: flat += it
    total = sum(cost(x) for x in flat)
    out = []
    k = 0; spent = 0
    for g in range(n):
        out.append(mf[g])
        budget = 8
        for x in fixed.get(g, []):
            out.append(x); budget -= cost(x) if not x.startswith("s_barrier") else 0
        if lo <= g < hi:
            target = total * (g - lo + 1) / (hi - lo)
            while k < len(flat) and spent < target + 4:
                c = cost(flat[k])
                if c > budget and not (spent < target - 24): break
                out.append(flat[k]); spent += c; budget -= c; k += 1
                if budget <= 0 and not (spent < target - 24): break
    out += flat[k:]
    return out

def unit_ffn(aset, queue, first_reads_done=True, nxt="same", barrier=None, lo=3, hi=132):
    mf = []; fixed = {}
    base = RI[0]
    for s in range(18):
        for a_ in range(2):
            f = 2 * s + a_
            for T in range(4):
                mf.append(mfma("n", aset, a_, T, s, base + f))
    for f in range(36):
        g0 = 4 * f
        pf = f + 4
        if pf < 36: rd = rd_ffn(base + pf, V_CUR, pf % 2, pf // 2)
        elif nxt: rd = rd_ffn(base + pf, V_NXT, (pf - 36) % 2, (pf - 36) // 2)
        else: rd = []
        if pf == 18:
            fixed.setdefault(g0, []).append(f"v_add_u32 v{V_CUR}, {3*STG}, v{V_CUR}")
        if pf == 36 and barrier:
            fixed.setdefault(g0, []).extend(barrier)
        if rd:
            fixed.setdefault(g0, []).append(rd[0])
            fixed.setdefault(g0 + 1, []).append(rd[1])
        if f % 2 == 1 and (f + 1 < 36 or nxt):
            issued_upto = min(pf, 35) if not nxt else pf
            allow = 2 * (issued_upto - (f + 2))
            fixed.setdefault(g0 + 3, []).append(f"s_waitcnt lgkmcnt({max(allow,0)})")
    RI[0] = base + 36
    return schedule(mf, fixed, queue, lo, hi)
RI = [0]

def gen_k1(stampit=False):
    global STAMP
    STAMP = stampit
    RI[0] = 0
    a = Asm()
    name = "k1_gemm1_kernel"
    a.lines.append(kernel_header(name).rstrip("\n"))
    a("s_cmp_ge_u32 s2, 256")
    a("s_cbranch_scc1 k1_end")
    stamp_at(a, 0)
    rt_begin(a, 1)
    a(f"s_load_dwordx2 s[4:5], s[0:1], {KA_WQKV}")
    a(f"s_load_dwordx4 s[48:51], s[0:1], {KA_WG}")
    a(f"s_load_dwordx2 s[46:47], s[0:1], {KA_WS}")
    a(f"s_load_dwordx2 s[6:7], s[0:1], {KA_WD}")
    a(f"v_and_b32 v{V_LANE}, 63, v0")
    a("v_lshrrev_b32 v16, 6, v0")
    a(f"v_lshlrev_b32 v{V_L16R}, 4, v{V_LANE}")
    a(f"v_readfirstlane_b32 s{S_W}, v16")
    a(f"s_and_b32 s{S_TMP}, s2, 7")
    a(f"s_lshr_b32 s{S_TMP2}, s2, 3")
    a(f"s_and_b32 s{S_G}, s{S_TMP2}, 3")
    a(f"s_lshl_b32 s{S_TMP}, s{S_TMP}, 2")
    a(f"s_add_u32 s{S_G}, s{S_G}, s{S_TMP}")
    a(f"s_lshr_b32 s{S_MT}, s{S_TMP2}, 2")
    a(f"s_add_u32 s{S_TMP}, s{S_G}, 22")
    a(f"s_lshr_b32 s{S_TMP}, s{S_TMP}, 1")
    a(f"s_cmp_lt_u32 s{S_G}, 22")
    a(f"s_cselect_b32 s{S_T0}, s{S_G}, s{S_TMP}")
    a(f"s_lshl_b32 s{S_TB}, s{S_MT}, 4")
    a(f"s_lshl_b32 s{S_TMP}, s{S_W}, 2")
    a(f"s_add_u32 s{S_TB}, s{S_TB}, s{S_TMP}")
    a(f"s_mul_i32 s{S_XOFF}, s{S_TB}, {18*1024}")
    a(f"s_add_u32 s{S_XOFF}, s{S_XOFF}, {WS_XF}")
    hasld = lambda g: any(x.startswith("buffer_") for x in g)
    vm = VM()
    a("s_waitcnt lgkmcnt(0)")
    srd(a, S_WS, 46, WS_END)
    for g in xload_stage(0):
        a.extend(g); vm.issue(("x", 0))
    a(f"v_lshrrev_b32 v16, 2, v{V_LANE}")
    a(f"v_and_b32 v17, 3, v{V_LANE}")
    a("v_lshrrev_b32 v18, 3, v16")
    a("v_lshlrev_b32 v18, 1, v18")
    a("v_xor_b32 v17, v17, v18")
    a("v_lshlrev_b32 v17, 4, v17")
    a(f"v_mul_u32_u24 v{V_DF}, 9216, v16")
    a(f"v_add_u32 v{V_DF}, v{V_DF}, v17")
    a(f"v_lshrrev_b32 v16, 3, v{V_LANE}")
    a(f"v_and_b32 v17, 7, v{V_LANE}")
    a("v_bfe_u32 v18, v16, 1, 1")
    a("v_lshlrev_b32 v18, 1, v18")
    a("v_xor_b32 v17, v17, v18")
    a("v_mul_u32_u24 v16, 3456, v16")
    a(f"s_and_b32 s{S_TMP}, s{S_W}, 1")
    a(f"s_lshl_b32 s{S_TMP}, s{S_TMP}, 2")
    a(f"v_xor_b32 v18, s{S_TMP}, v17")
    a(f"v_lshl_add_u32 v{V_DQA}, v18, 4, v16")
    a("v_xor_b32 v18, 4, v18")
    a(f"v_lshl_add_u32 v{V_DQB}, v18, 4, v16")
    srd(a, S_WQ, 4, 576*1728*2)
    a(f"s_cmp_lt_u32 s{S_W}, 2")
    a("s_cselect_b32 s4, s48, s50")
    a("s_cselect_b32 s5, s49, s51")
    srd(a, S_WF, 4, 576*4608*2)
    a(f"s_and_b32 s{S_TMP}, s{S_W}, 1")
    a(f"s_mul_i32 s{S_FROW}, s{S_TMP}, {48*9216}")
    a(f"s_mul_i32 s{S_FLDS}, s{S_TMP}, 3072")
    a(f"s_lshr_b32 s{S_TMP}, s{S_W}, 1")
    a(f"s_mul_i32 s{S_TMP}, s{S_TMP}, 6144")
    a(f"s_add_u32 s{S_FLDS}, s{S_FLDS}, s{S_TMP}")
    a(f"s_mul_i32 s{S_QROW}, s{S_W}, {24*3456}")
    a(f"s_lshl_b32 s{S_TMP}, s{S_T0}, 7")
    a(f"s_add_u32 s{S_QROW}, s{S_QROW}, s{S_TMP}")
    a(f"s_mul_i32 s{S_QLDS}, s{S_W}, {24*128}")
    a(f"s_mul_i32 s{S_COL}, s{S_G}, 288")
    a(f"s_and_b32 s{S_TMP}, s{S_G}, 1")
    a(f"s_lshl_b32 s{S_TMP2}, s{S_TMP}, 5")
    a(f"s_add_u32 s{S_COL}, s{S_COL}, s{S_TMP2}")
    a(f"v_add_u32 v{V_DF}, s{S_COL}, v{V_DF}")
    a(f"v_add_u32 v{V_DF2}, 64, v{V_DF}")
    a(f"s_cmp_eq_u32 s{S_TMP}, 0")
    a(f"s_mov_b32 s{S_D4}, -192")
    a(f"s_cselect_b32 s{S_D4}, 128, s{S_D4}")
    for j in range(6):
        for i in range(3):
            a(f"s_add_u32 s{S_TAB + 3*j + i}, s{S_FROW}, {(96*j + 16*i) * 9216 - 1024*i}")
    def issue_stage(j, with_x=True, xtag=None):
        groups = []
        for g in dma_qkv_stage(j): groups.append((g, ("x", j) if not with_x else ("w", j)))
        for g in dma_ffn_stage(j, REG, 0): groups.append((g, ("x", j) if not with_x else ("w", j)))
        if with_x:
            for g in xload_stage(j): groups.append((g, ("x", j)))
        return groups
    for g, tag in issue_stage(0, with_x=False):
        a.extend(g)
        if hasld(g): vm.issue(tag)
    a(f"v_and_b32 v16, 15, v{V_LANE}")
    a("v_lshrrev_b32 v17, 2, v16")
    a("v_and_b32 v16, 3, v16")
    a("v_lshlrev_b32 v16, 3, v16")
    a(f"v_lshrrev_b32 v18, 4, v{V_LANE}")
    a("v_lshl_add_u32 v19, v18, 3, v17")
    a("v_lshl_add_u32 v20, v19, 6, v16")
    a("v_and_b32 v21, 1, v18")
    a(f"v_lshl_add_u32 v{V_TF0}, v21, 5, v20")
    a("v_xor_b32 v21, 1, v21")
    a(f"v_lshl_add_u32 v{V_TF1}, v21, 5, v20")
    a("v_lshl_add_u32 v20, v19, 7, v16")
    a("v_bfe_u32 v21, v17, 1, 1")
    a("v_and_b32 v22, 1, v18")
    a("v_lshl_or_b32 v21, v22, 1, v21")
    for z in range(4):
        a(f"v_xor_b32 v22, {z}, v21")
        a(f"v_lshl_add_u32 v{V_TQ+z}, v22, 5, v20")
    a(f"v_and_b32 v16, 15, v{V_LANE}")
    a("v_and_b32 v17, 1, v18")
    a("v_lshl_add_u32 v16, v17, 5, v16")
    a("v_lshlrev_b32 v16, 4, v16")
    a("v_lshrrev_b32 v17, 1, v18")
    a(f"v_lshl_add_u32 v{V_HP}, v17, 3, v16")
    for j in range(1, NPRE):
        for g, tag in issue_stage(j):
            a.extend(g)
            if hasld(g): vm.issue(tag)
    a(f"s_lshr_b32 s{S_HOFF}, s{S_TB}, 1")
    a(f"s_mul_i32 s{S_HOFF}, s{S_HOFF}, 288")
    a(f"s_mul_i32 s{S_TMP}, s{S_G}, 9")
    a(f"s_add_u32 s{S_HOFF}, s{S_HOFF}, s{S_TMP}")
    a(f"s_lshl_b32 s{S_HOFF}, s{S_HOFF}, 10")
    a(f"s_add_u32 s{S_HOFF}, s{S_HOFF}, {WS_HF}")
    a(f"s_and_b32 s{S_TMP}, s{S_G}, 1")
    a(f"s_cmp_eq_u32 s{S_TMP}, 0")
    a(f"s_cselect_b32 s{S_TMP2}, {8*1024}, 0")
    a(f"s_add_u32 s{S_HLAST}, s{S_HOFF}, s{S_TMP2}")
    a(f"s_lshl_b32 s{S_TMP}, s{S_TMP}, 10")
    a(f"s_add_u32 s{S_HOFF}, s{S_HOFF}, s{S_TMP}")
    a(f"v_add_u32 v{V_CUR}, {REG}, v{V_TF0}")
    a(f"v_add_u32 v{V_NXT}, {REG}, v{V_TF1}")
    stamp_at(a, 1)
    a(vm.wait(("x", 0)))
    a("s_barrier")
    stamp_at(a, 2)

    def pass1(kind):
        vmx = VM(); vmx.n = vm.n; vmx.tags = dict(vm.tags)
        seq = []
        for s in range(18):
            for e in range(8): seq.append((s, e))
        def rd(fi):
            s, e = seq[fi]
            if e < 4: return rd_qkv(fi, e, s)
            return rd_ffn(fi, V_CUR if e < 6 else V_NXT, e % 2, s)
        mf = []; fixed = {}
        for fi, (s, e) in enumerate(seq):
            aset = ACC[e // 2]; a_ = e % 2
            k = kind if e < 4 else "n"
            for T in range(4): mf.append(mfma(k, aset, a_, T, s, fi))
        PF = 4
        pre = []
        for fi in range(PF): pre += rd(fi)
        out = list(pre) + ["s_waitcnt lgkmcnt(4)"]
        nper = 24 * 4
        for j in range(6):
            m = mf[j*nper:(j+1)*nper]
            fx = {}
            for fl in range(24):
                fi = j*24 + fl
                g0 = 4*fl
                pf = fi + PF
                if pf < len(seq):
                    if pf % 24 == 0:
                        fx.setdefault(g0, []).append("@WAIT" + str(j+1))
                        fx.setdefault(g0, []).append("s_barrier")
                    if pf == 72:
                        for reg in (V_TQ, V_TQ+1, V_TQ+2, V_TQ+3, V_CUR, V_NXT):
                            fx.setdefault(g0, []).append(f"v_add_u32 v{reg}, {3*STG}, v{reg}")
                    r = rd(pf)
                    fx.setdefault(g0, []).append(r[0]); fx.setdefault(g0+1, []).append(r[1])
                if fi % 2 == 1 and fi + 1 < len(seq):
                    allow = 2 * (min(pf, len(seq)-1) - (fi + 2))
                    fx.setdefault(g0+3, []).append(f"s_waitcnt lgkmcnt({max(allow,0)})")
            q = []; tags = []
            if j >= 2:
                for g in dma_ffn_stage(j - 2, 0, 1):
                    q.append(g)
                    if hasld(g): tags.append(("p1", j-2))
            if NPRE == 1: nxts = [1, 2] if j == 0 else ([j + 2] if j + 2 < 6 else [])
            else: nxts = [j + NPRE] if j + NPRE < 6 else []
            pre_q = []
            for jj in nxts:
                for g, tag in issue_stage(jj):
                    pre_q.append((g, tag))
            q2 = [g for g, t in pre_q] + q
            tags = [t for g, t in pre_q if hasld(g)] + tags
            q = q2
            st = schedule(m, fx, q, lo=0, hi=80)
            gi = 0
            res = []
            for ins in st:
                if ins.startswith("@WAIT"):
                    res.append(vmx.wait(("x", int(ins[5:])))); continue
                res.append(ins)
                if ins.startswith("buffer_load"):
                    vmx.issue(tags[gi]); gi += 1
            assert gi == len(tags)
            out += res
        return out, vmx

    fl = lambda L: [x for g in L for x in g]
    def dm(region, pair):
        o = [g for j in range(6) for g in dma_ffn_stage(j, region, pair)]
        if pair == 2: o = [[f"v_add_u32 v{V_DF}, 128, v{V_DF}"]] + o
        if pair == 3: o = [[f"v_add_u32 v{V_DF2}, 128, v{V_DF2}"]] + o
        if pair == 4: o = [[f"v_add_u32 v{V_DF}, s{S_D4}, v{V_DF}"]] + o
        return o
    SETS = {0: ACC[2], 1: ACC[3], 2: ACC[4], 3: ACC[0], 4: ACC[1], 5: ACC[2], 6: ACC[3], 7: ACC[4], 8: ACC[0]}
    class EQ:
        def __init__(s): s.items = [(k, x) for k in range(9) for x in epi_ffn(SETS[k], k == 8)]; s.pos = 0
        def take(s, unit, budget):
            out = []; c = 0
            must = [k for k in range(unit) if unit + 1 <= 8 and SETS[k] == SETS[unit + 1]]
            lastmust = max([i for i, (k, x) in enumerate(s.items) if k in must], default=-1)
            while s.pos < len(s.items):
                k, x = s.items[s.pos]
                if k >= unit: break
                if c >= budget and s.pos > lastmust: break
                out.append(x); c += cost(x); s.pos += 1
            return out
        def rest(s):
            o = [x for k, x in s.items[s.pos:]]; s.pos = len(s.items); return o
    def merge(dmas, epi):
        if not dmas: return epi
        out = []; n = len(epi); m = len(dmas); gi = 0
        for i, x in enumerate(epi):
            while gi < m and gi * max(n, 1) <= i * m * 1.25: out += dmas[gi]; gi += 1
            out.append(x)
        while gi < m: out += dmas[gi]; gi += 1
        return out
    BUD = EPI_BUDGET
    def resolve(lines):
        out = []; cnt = {}
        for ins in lines:
            if ins.startswith("@VM:"):
                tag = ins[4:]
                out.append(f"s_waitcnt vmcnt({min(cnt[tag], 63)})"); continue
            if ins.startswith("buffer_"):
                for t in cnt: cnt[t] += 1
                if "; tag=" in ins: cnt[ins.split("; tag=")[1]] = 0
            out.append(ins)
        return out
    bar = lambda tag: [f"@VM:{tag}", "s_waitcnt lgkmcnt(0)", "s_barrier"]

    a(f"s_cmp_ge_u32 s{S_T0}, 18")
    a("s_cbranch_scc1 k1_vpath")
    eq_state = None
    for kind in ("n", "v"):
        if kind == "v": a.label("k1_vpath")
        if kind == "n":
            a(f"s_mov_b32 s{S_SCALE}, {float_hex(QSCALE2)}")
            a(f"s_cmp_lt_u32 s{S_T0}, 9")
            a(f"s_cselect_b32 s{S_SCALE}, s{S_SCALE}, 1.0")
            a(f"s_lshl_b32 s{S_QKOFF}, s{S_T0}, 18")
            a(f"s_lshl_b32 s{S_TMP}, s{S_TB}, 6")
            a(f"s_add_u32 s{S_QKOFF}, s{S_QKOFF}, s{S_TMP}")
            a(f"s_add_u32 s{S_QKOFF}, s{S_QKOFF}, {WS_QKP}")
            a(f"v_lshrrev_b32 v16, 4, v{V_LANE}")
            a(f"v_and_b32 v17, 15, v{V_LANE}")
            a("v_lshlrev_b32 v17, 2, v17")
            a(f"v_lshl_add_u32 v{V_QP}, v16, 14, v17")
            e0, e1 = epi_qk(ACC[0]), epi_qk(ACC[1])
        else:
            a(f"s_mul_i32 s{S_QKOFF}, s{S_TB}, 576")
            a(f"s_add_u32 s{S_QKOFF}, s{S_QKOFF}, {WS_VF}")
            def vpat(q, a_, dst):
                o = []
                o.append(f"s_lshl_b32 s{S_TMP2}, s{S_T0}, 6")
                o.append(f"s_sub_u32 s{S_TMP2}, s{S_TMP2}, {1152 - 32*q - 16*a_}")
                o.append(f"v_and_b32 v{dst}, 15, v{V_LANE}")
                o.append(f"v_add_u32 v{dst}, s{S_TMP2}, v{dst}")
                o.append(f"v_mul_u32_u24 v{TMP+22}, 3641, v{dst}")
                o.append(f"v_lshrrev_b32 v{TMP+22}, 16, v{TMP+22}")
                o.append(f"v_mul_u32_u24 v{TMP+23}, 18, v{TMP+22}")
                o.append(f"v_sub_u32 v{dst}, v{dst}, v{TMP+23}")
                o.append(f"v_lshlrev_b32 v{dst}, 4, v{dst}")
                o.append(f"v_mul_u32_u24 v{TMP+22}, {128*576}, v{TMP+22}")
                o.append(f"v_add_u32 v{dst}, v{dst}, v{TMP+22}")
                o.append(f"v_bfe_u32 v{TMP+22}, v{V_LANE}, 4, 1")
                o.append(f"v_mul_u32_u24 v{TMP+22}, 288, v{TMP+22}")
                o.append(f"v_add_u32 v{dst}, v{dst}, v{TMP+22}")
                o.append(f"v_lshrrev_b32 v{TMP+22}, 5, v{V_LANE}")
                o.append(f"v_lshl_add_u32 v{dst}, v{TMP+22}, 3, v{dst}")
                return o
            e0 = vpat(0, 0, TMP+16) + vpat(0, 1, TMP+17) + epi_v(ACC[0], (TMP+16, TMP+17))
            e1 = vpat(1, 0, TMP+16) + vpat(1, 1, TMP+17) + epi_v(ACC[1], (TMP+16, TMP+17))
        RI[0] = 0
        st, vmx = pass1(kind)
        L = list(st)
        L += [vmx.wait(("p1", 3)), "s_waitcnt lgkmcnt(0)", "s_barrier"]
        if STAMP: L.append(f"s_memtime s[{STB+6}:{STB+7}]")
        L += fl([g for j in (4, 5) for g in dma_ffn_stage(j, 0, 1)])
        L += [f"v_mov_b32 v{V_CUR}, v{V_TF0}", f"v_mov_b32 v{V_NXT}, v{V_TF1}"]
        RI[0] = 144
        for fi in range(4): L += rd_ffn(RI[0] + fi, V_CUR, fi % 2, fi // 2)
        L.append("s_waitcnt lgkmcnt(4)")
        eq = EQ()
        d2 = dm(REG, 2)
        st = unit_ffn(ACC[4], merge(d2[:11], list(e0) + list(e1)), nxt=True, lo=2, hi=140)
        res = []; done = False; bumped = False
        for ins in st:
            if ins.startswith(f"v_add_u32 v{V_CUR}, {3*STG}"): bumped = True
            if bumped and not done and ins.startswith("ds_read_b64_tr_b16") and ins.endswith(f"offset:{STG}"):
                res += ["@VM:p1b5", "s_barrier"]; done = True
            res.append(ins)
        assert done
        L += res
        L += [f"v_mov_b32 v{V_CUR}, v{V_NXT}", f"v_add_u32 v{V_NXT}, {REG}, v{V_TF0}"]
        L += unit_ffn(ACC[0], merge(d2[11:], eq.take(3, BUD)), nxt=True, barrier=bar("p2b5"), lo=2, hi=124)
        a.extend(resolve(L))
        a("s_branch k1_ffn")
        if eq_state is None: eq_state = eq.pos
        assert eq_state == eq.pos
    a.label("k1_ffn")
    stamp_at(a, 4)
    L = []
    d3 = dm(0, 3); d4 = dm(REG, 4)
    L += [f"v_mov_b32 v{V_CUR}, v{V_NXT}", f"v_add_u32 v{V_NXT}, {REG}, v{V_TF1}"]
    L += unit_ffn(ACC[1], merge(d3[:15], eq.take(4, BUD)), nxt=True, lo=2, hi=140)
    L += [f"v_mov_b32 v{V_CUR}, v{V_NXT}", f"v_mov_b32 v{V_NXT}, v{V_TF0}"]
    L += unit_ffn(ACC[2], merge(d3[15:], eq.take(5, BUD)), nxt=True, barrier=bar("p3b5"), lo=2, hi=124)
    if STAMP: L.append(f"s_memtime s[{STB+10}:{STB+11}]")
    L += [f"v_mov_b32 v{V_CUR}, v{V_NXT}", f"v_mov_b32 v{V_NXT}, v{V_TF1}"]
    pf = []
    if PREFETCH_WD:
        P0, P1 = V_TQ, V_TQ + 1
        pf += [f"s_mov_b32 s{S_WQ}, s6", f"s_and_b32 s{S_WQ+1}, s7, 0xffff", f"s_mov_b32 s{S_WQ+2}, {4608*576*2}",
               f"s_and_b32 s{S_TMP}, s2, 7", f"s_lshr_b32 s{S_TMP2}, s{S_TMP}, 1", f"s_mul_i32 s{S_TMP2}, s{S_TMP2}, 1152",
               f"s_lshr_b32 s{S_TMP3}, s2, 3", f"s_mul_i32 s{S_TMP3}, s{S_TMP3}, 36", f"s_add_u32 s{S_TMP2}, s{S_TMP2}, s{S_TMP3}",
               f"s_mul_i32 s{S_TMP2}, s{S_TMP2}, 1152", f"s_and_b32 s{S_TMP}, s{S_TMP}, 1", f"s_mul_i32 s{S_TMP}, s{S_TMP}, 576",
               f"s_add_u32 s{S_XOFF}, s{S_TMP2}, s{S_TMP}"]
        pf += [f"s_mul_i32 s{S_TMP}, s{S_W}, 81"]
        for r in range(2):
            pf += [f"v_add_u32 v{P0}, {64*r}, v{V_LANE}"]
            if r == 1: pf += [f"v_min_u32 v{P0}, 80, v{P0}"]
            pf += [f"v_add_u32 v{P0}, s{S_TMP}, v{P0}", f"v_mul_u32_u24 v{P1}, 7282, v{P0}", f"v_lshrrev_b32 v{P1}, 16, v{P1}",
                   f"v_mul_u32_u24 v{P0+2}, 9, v{P1}", f"v_sub_u32 v{P0}, v{P0}, v{P0+2}", f"v_mul_u32_u24 v{P1}, 1152, v{P1}",
                   f"v_lshl_add_u32 v{P0}, v{P0}, 6, v{P1}", f"buffer_load_dword v{P0+3}, v{P0}, s[{S_WQ}:{S_WQ+3}], s{S_XOFF} offen"]
    L += unit_ffn(ACC[3], merge(d4[:15], eq.take(6, BUD)), nxt=True, lo=2, hi=140)
    L += [f"s_and_b32 s{S_TMP}, s{S_G}, 1", f"s_cmp_eq_u32 s{S_TMP}, 1", "s_cselect_b64 vcc, -1, 0", f"v_mov_b32 v{V_CUR}, v{V_NXT}", "s_nop 1",
          f"v_cndmask_b32 v{V_TF8}, v{V_TF0}, v{V_TF1}, vcc", f"v_add_u32 v{V_NXT}, {REG}, v{V_TF8}"]
    L += unit_ffn(ACC[4], merge(d4[15:], eq.take(7, BUD)), nxt=True, barrier=bar("p4b5"), lo=2, hi=124)
    if STAMP: L.append(f"s_memtime s[{STB+12}:{STB+13}]")
    L += [f"v_mov_b32 v{V_CUR}, v{V_NXT}"]
    L += unit_ffn(ACC[0], pf + eq.take(8, BUD), nxt=None, lo=2, hi=140)
    if STAMP: L.append(f"s_memtime s[{STB+14}:{STB+15}]")
    L += ["s_nop 7"] + eq.rest()
    a.extend(resolve(L))
    a("s_waitcnt vmcnt(0)")
    stamp_at(a, 8)
    stamp_out(a, 9)
    a("s_waitcnt vmcnt(0)")
    rt_end(a, 1, 46, S_W)
    a.label("k1_end")
    a("s_endpgm")
    fix_m0(a)
    return a.text() + kernel_desc(name, 512, 256, 100), name
```

```python
import sys
from common import *
from k0 import gen_k0
from k1b import gen_k1, K1_LDS
from k2b import gen_k2, K2_LDS
from k3c import gen_k3, K3_LDS
HEADER = open('parallel_sum__softmax_full_mha__swiglu_ffn__prompt.s.ref').read().split("; Override launch")[0]
def build(kernels, launches):
    s = HEADER
    for (n,g,b,l) in launches:
        s += f"; @launch kernel={n} grid=({g},1,1) block=({b},1,1) lds={l}\n"
    s += '.amdgcn_target "amdgcn-amd-amdhsa--gfx950"\n.text\n'
    for k in kernels: s += k
    return s
if __name__ == "__main__":
    RT["on"] = 'rt' in sys.argv
    CODEPF["on"] = 'nocpf' not in sys.argv
    import k0
    k0.PF128 = 'pf128' in sys.argv
    k0.PREFETCH = 'nopf' not in sys.argv
    k0.K0SLEEP = 3 if 'k0sleep' in sys.argv else 0
    ks = []; launches = []
    t, n = gen_k0(); ks.append(t); launches.append((n,256,256,0))
    t, n = gen_k1(stampit=('stamp' in sys.argv)); ks.append(t); launches.append((n,256,256,K1_LDS))
    t, n = gen_k2(stampit=('stamp' in sys.argv), exp=[x for x in sys.argv if x in ('nogm','nogl','noa','nods','nopv','nox8','noexp','nowait','nord','nobar','forceslow','margin0','prio0','prioG','gnord','gnomf','gsleep')]); ks.append(t); launches.append((n,256,512,K2_LDS))
    t, n = gen_k3(); ks.append(t); launches.append((n,288,256,K3_LDS))
    import re
    sfk = [1, 2]
    for x in sys.argv:
        if x.startswith("sfk="): sfk = [int(c) for c in x[4:]]
    ks = [re.sub((r"(buffer_store_dwordx\w+ [^\n;]*offen[^\n;]*)" if 'nodwsc1' in sys.argv else r"(buffer_store_\w+ [^\n;]*offen[^\n;]*)"), lambda m: m.group(1).rstrip() + " sc1", k) if i in sfk else k for i, k in enumerate(ks)]
    out = sys.argv[1] if len(sys.argv) > 1 else "out.s"
    open(out, "w").write(build(ks, launches))
    print("wrote", out)
```

```python
import sys
sys.path.insert(0,'work')
from gpulib import metadata, kdesc
def kernel(name, body, iters, vg=256, acc=256, role2=None, pre="", nptr=1, iters2=None):
    s = f""".globl {name}
.p2align 8
.type {name},@function
{name}:
  s_load_dwordx2 s[4:5], s[0:1], 0
  v_lshrrev_b32 v1, 6, v0
  s_nop 1
  v_readfirstlane_b32 s6, v1
  s_nop 3
  s_lshl_b32 s7, s2, 4
  s_add_u32 s7, s7, s6
  s_lshl_b32 s7, s7, 3
"""
    for i in range(2, min(vg,256)):
        s += f"  v_mov_b32 v{i}, 0\n"
    s += pre
    s += "  s_waitcnt lgkmcnt(0)\n  s_barrier\n"
    if role2 is not None:
        s += f"  s_cmp_ge_u32 s6, 4\n  s_cbranch_scc1 {name}_r2\n"
    s += f"  s_mov_b32 s8, {iters}\n  s_memtime s[10:11]\n  s_waitcnt lgkmcnt(0)\n.p2align 6\n{name}_loop:\n"
    s += body
    s += f"  s_sub_u32 s8, s8, 1\n  s_cmp_lg_u32 s8, 0\n  s_cbranch_scc1 {name}_loop\n  s_branch {name}_end\n"
    if role2 is not None:
        s += f"{name}_r2:\n  s_mov_b32 s8, {iters2 or iters}\n  s_memtime s[10:11]\n  s_waitcnt lgkmcnt(0)\n.p2align 6\n{name}_loop2:\n"
        s += role2
        s += f"  s_sub_u32 s8, s8, 1\n  s_cmp_lg_u32 s8, 0\n  s_cbranch_scc1 {name}_loop2\n"
    s += f"""{name}_end:
  s_nop 15
  s_nop 15
  s_memtime s[12:13]
  s_waitcnt lgkmcnt(0)
  v_mov_b32 v2, s10
  v_mov_b32 v3, s12
  v_mov_b32 v5, s7
  v_and_b32 v4, 63, v0
  v_cmp_eq_u32 vcc, 0, v4
  s_and_saveexec_b64 s[14:15], vcc
  global_store_dwordx2 v5, v[2:3], s[4:5]
  s_waitcnt vmcnt(0)
  s_endpgm
"""
    s += kdesc(name, vg=vg, acc=acc, nptr=nptr)
    return s
def finish(path, src, names, nptr=1):
    src = '.amdgcn_target "amdgcn-amd-amdhsa--gfx950"\n.text\n' + src
    src += metadata([(n[0],1024,256,100) for n in names], nptr)
    open(path+'.s','w').write(src)
    import json
    json.dump(names, open(path+'.json','w'))
```

```python
from mbgen import *
def sym(ntiles=4, nm=25, nds=33, nw=8):
    ex=[f"  v_exp_f32 v{8+i%16}, v{24+i%16}\n" for i in range(16*ntiles)]
    cv=[f"  v_cvt_pk_bf16_f32 v{40+i%8}, v{24+2*(i%8)}, v{25+2*(i%8)}\n" for i in range(8*ntiles)]
    va=[]
    while ex or cv:
        if ex: va.append(ex.pop(0))
        if ex: va.append(ex.pop(0))
        if cv: va.append(cv.pop(0))
    ds=[f"  ds_read_b64_tr_b16 v[{48+2*(i%4)}:{49+2*(i%4)}], v61 offset:{(i%16)*512}\n" for i in range(nds)]
    out=""
    for m in range(nm):
        a=64+16*(m%8)
        out+=f"  v_mfma_f32_32x32x16_bf16 v[{a}:{a+15}], v[2:5], v[6:9], v[{a}:{a+15}]\n"
        lo,hi=len(va)*m//nm,len(va)*(m+1)//nm
        out+="".join(va[lo:hi])
        lo,hi=len(ds)*m//nm,len(ds)*(m+1)//nm
        out+="".join(ds[lo:hi])
        if (m*nw)//nm != ((m+1)*nw)//nm: out+="  s_waitcnt lgkmcnt(4)\n"
    return out
def attnA(nsteps=8):
    out=""
    for s in range(nsteps):
        if s%2==0: out+="".join(f"  ds_read_b128 v[{48+4*i}:{51+4*i}], v61 offset:{1024*i}\n" for i in range(3))
        else: out+="  s_waitcnt lgkmcnt(0)\n"
        for g in range(4):
            a=64+16*(g%4)
            out+=f"  v_mfma_f32_32x32x16_bf16 v[{a}:{a+15}], v[2:5], v[6:9], v[{a}:{a+15}]\n"
            out+="".join(f"  v_exp_f32 v{8+4*g+i}, v{24+4*g+i}\n" for i in range(4))
            out+="".join(f"  v_cvt_pk_bf16_f32 v{40+2*g+i}, v{24+2*i}, v{25+2*i}\n" for i in range(2))
    return out
def gem(n=18):
    out=""
    for m in range(n):
        a=64+16*(m%9)
        out+=f"  ds_read_b64_tr_b16 v[48:49], v61 offset:{(m%16)*512}\n  ds_read_b64_tr_b16 v[50:51], v61 offset:{(m%16)*512+256}\n  s_waitcnt lgkmcnt(4)\n"
        out+=f"  v_mfma_f32_32x32x16_bf16 v[{a}:{a+15}], v[2:5], v[6:9], v[{a}:{a+15}]\n"
    return out
PRE="  v_and_b32 v61, 63, v0\n  v_lshlrev_b32 v61, 3, v61\n"
src=""; names=[]
for nm in (25,26):
    n=f"mb_sym{nm}"
    src+=kernel(n, sym(nm=nm)+"  s_barrier\n", 200, vg=224, acc=224, pre=PRE); names.append((n,200,[512],False))
n="mb_symnb"; src+=kernel(n, sym(nm=25), 200, vg=224, acc=224, pre=PRE); names.append((n,200,[512],False))
n="mb_role"; src+=kernel(n, attnA()+"  s_barrier\n", 200, vg=224, acc=224, pre=PRE, role2=gem()+"  s_barrier\n"); names.append((n,200,[512],True))
finish('mb12', src, names)
```
